```python
import torch

def _softmax(x, axis=-1):
    return torch.softmax(x, dim=axis)
def _gelu(x):
    return torch.nn.functional.gelu(x, approximate="tanh")
def _silu(x):
    return torch.nn.functional.silu(x)
def _sigmoid(x):
    return torch.sigmoid(x)
def _layernorm(x, axis=-1, eps=1e-5):
    m = x.mean(dim=axis, keepdim=True)
    v = x.var(dim=axis, keepdim=True, unbiased=False)
    return (x - m) / torch.sqrt(v + eps)
def _scatter_add(tgt, idx, src, axis=0):
    return tgt.clone().index_add_(axis, idx, src)
def _segment_sum(src, seg, n):
    out = torch.zeros((n,) + src.shape[1:], dtype=src.dtype)
    return out.index_add_(0, seg, src)
def _pad(x, pw):
    flat = tuple(v for pair in reversed(pw) for v in pair)
    return torch.nn.functional.pad(x, flat)

kernel_name = 'interleave_layers__sliding_local_dilated__ssm_conv_s4d__prompt'

def setup_inputs():

    _w = (lambda a: (lambda t: t.to(torch.bfloat16) if t.is_floating_point() else t)(torch.as_tensor(a)))
    def _A_setup():
        B, S, D = 1, 2048, 640
        return {
            "x": _w((lambda *s: torch.randn(*s, dtype=torch.bfloat16) * 0.05)(B, S, D)),
            "wqkv": _w((lambda *s: torch.randn(*s, dtype=torch.bfloat16) * 0.05)(D, 3 * D)),
            "wo": _w((lambda *s: torch.randn(*s, dtype=torch.bfloat16) * 0.05)(D, D)),
        }
    _A_in = _A_setup()

    def _B_setup():
        Bsz, L, D, N = 1, 2048, 640, 192
        return {
            "u": _w((lambda *s: torch.randn(*s, dtype=torch.bfloat16) * 0.05)(Bsz, L, D)),
            "log_A_real": _w((lambda *s: torch.randn(*s, dtype=torch.bfloat16) * 3.2)(D, N) * 0.5),
            "A_imag": _w((lambda *s: torch.randn(*s, dtype=torch.bfloat16) * 0.1)(D, N) * 3.14),
            "C_real": _w((lambda *s: torch.randn(*s, dtype=torch.bfloat16) * 0.4)(D, N) / N ** 0.5),
            "C_imag": _w((lambda *s: torch.randn(*s, dtype=torch.bfloat16) * 0.4)(D, N) / N ** 0.5),
            "log_dt": _w((lambda *s: torch.randn(*s, dtype=torch.bfloat16) * 0.1)(D) * 0.5 - 4.0),
            "D_skip": _w((lambda *s: torch.randn(*s, dtype=torch.bfloat16) * 0.1)(D)),
        }
    _B_in = _B_setup()

    return {
        "A_x": _A_in["x"],
        "A_wqkv": _A_in["wqkv"],
        "A_wo": _A_in["wo"],
        "B_u": _B_in["u"],
        "B_log_A_real": _B_in["log_A_real"],
        "B_A_imag": _B_in["A_imag"],
        "B_C_real": _B_in["C_real"],
        "B_C_imag": _B_in["C_imag"],
        "B_log_dt": _B_in["log_dt"],
        "B_D_skip": _B_in["D_skip"],
    }

def reference(A_x, A_wqkv, A_wo, B_u, B_log_A_real, B_A_imag, B_C_real, B_C_imag, B_log_dt, B_D_skip):
    def _A_ref(x, wqkv, wo):
        B, S, D = x.shape
        H = 32; Dh = D // H
        W, dil = 8, 2
        qkv = (lambda x, *d: x.permute(*d))((x @ wqkv).reshape(B, S, 3, H, Dh), 2, 0, 3, 1, 4)
        q, k, v = qkv[0], qkv[1], qkv[2]
        scale = Dh ** -0.5
        pos = torch.arange(S)
        off = torch.arange(W) * dil
        idx = pos[:, None] - off[None, :]
        mask = idx >= 0
        idx_c = torch.where(mask, idx, 0).reshape(-1)
        kg = k[:, :, idx_c, :].reshape(B, H, S, W, Dh)
        vg = v[:, :, idx_c, :].reshape(B, H, S, W, Dh)
        logits = torch.einsum("bhsd,bhswd->bhsw", q, kg) * scale
        logits = torch.where(mask[None, None, :, :], logits, -1e9)
        attn = _softmax(logits, axis=-1)
        o = torch.einsum("bhsw,bhswd->bhsd", attn, vg)
        return (lambda x, *d: x.permute(*d))(o, 0, 2, 1, 3).reshape(B, S, D) @ wo

    def _B_ref(u, log_A_real, A_imag, C_real, C_imag, log_dt, D_skip):
        L = u.shape[1]
        dt = torch.exp(log_dt)
        A = -torch.exp(log_A_real) + 1j * A_imag
        C = (C_real + 1j * C_imag) * dt[:, None]
        pos = (lambda x, dt: x.to(dt))(torch.arange(L), log_dt.dtype)
        P = torch.exp((A * dt[:, None])[:, :, None] * pos[None, None, :])
        K = 2.0 * torch.einsum("dn,dnl->dl", C, P).real
        L2 = 2 * L
        u_t = (lambda x, *d: x.permute(*d))(u, 0, 2, 1)
        Kf = (lambda x, *a, **k: torch.fft.rfft(x.float(), *a, **k))(K, L2)
        Uf = (lambda x, *a, **k: torch.fft.rfft(x.float(), *a, **k))(u_t, L2)
        y = (lambda x, *a, **k: torch.fft.irfft(x, *a, **k).to(torch.bfloat16))(Uf * Kf[None, :, :], L2)[:, :, :L]
        y = (lambda x, *d: x.permute(*d))(y, 0, 2, 1)
        return y + u * D_skip[None, None, :]

    x = A_x
    x = x + _A_ref(_layernorm(x, axis=-1), A_wqkv, A_wo)
    x = x + _B_ref(_layernorm(x, axis=-1), B_log_A_real, B_A_imag, B_C_real, B_C_imag, B_log_dt, B_D_skip)
    x = x + _A_ref(_layernorm(x, axis=-1), A_wqkv, A_wo)
    x = x + _B_ref(_layernorm(x, axis=-1), B_log_A_real, B_A_imag, B_C_real, B_C_imag, B_log_dt, B_D_skip)
    return x
```

```python
import re

REG_RE = re.compile(r"^(-?)(abs\()?([vas])(?:(\d+)|\[(\d+):(\d+)\])\)?$")
TRANS = ("v_exp_f32", "v_log_f32", "v_rcp_f32", "v_rsq_f32", "v_sqrt_f32", "v_sin_f32", "v_cos_f32")
RMW = ("v_fmac_", "v_dot2c_", "v_pk_fmac", "v_writelane")


def v(n, c=1):
    return f"v{n}" if c == 1 else f"v[{n}:{n + c - 1}]"


def a(n, c=1):
    return f"a{n}" if c == 1 else f"a[{n}:{n + c - 1}]"


def s(n, c=1):
    return f"s{n}" if c == 1 else f"s[{n}:{n + c - 1}]"


def regs_of(op):
    op = op.strip()
    if op in ("vcc", "vcc_lo", "vcc_hi"):
        return {("s", "vcc")}
    if op in ("exec", "exec_lo", "exec_hi"):
        return {("s", "exec")}
    if op == "m0":
        return {("s", "m0")}
    m = REG_RE.match(op)
    if not m:
        return set()
    f = m.group(3)
    if m.group(4) is not None:
        return {(f, int(m.group(4)))}
    return {(f, i) for i in range(int(m.group(5)), int(m.group(6)) + 1)}


class Ins:
    __slots__ = ("text", "mn", "ops", "mods", "defs", "uses", "kind", "tok", "label", "target",
                 "srcc", "srcab", "passes", "dpp", "sdata")

    def __init__(self, text):
        self.text = text
        self.label = None
        self.target = None
        self.tok = None
        self.defs = set()
        self.uses = set()
        self.srcc = set()
        self.srcab = set()
        self.sdata = set()
        self.passes = 0
        self.dpp = False
        self.kind = "other"
        t = text.split(";")[0].strip()
        if t.endswith(":"):
            self.label = t[:-1]
            self.mn = "label"
            self.kind = "label"
            self.ops = []
            self.mods = ""
            return
        parts = t.split(None, 1)
        self.mn = parts[0]
        rest = parts[1] if len(parts) > 1 else ""
        ops = []
        depth = 0
        cur = ""
        for ch in rest:
            if ch in "[(":
                depth += 1
            if ch in "])":
                depth -= 1
            if ch == "," and depth == 0:
                ops.append(cur.strip())
                cur = ""
            else:
                cur += ch
        last = cur.strip().split(None, 1) if cur.strip() else []
        self.mods = ""
        if last:
            ops.append(last[0])
            self.mods = last[1] if len(last) > 1 else ""
        self.ops = ops
        self.classify()

    def classify(self):
        mn, ops, mods = self.mn, self.ops, self.mods
        R = [regs_of(o) for o in ops]
        allr = set().union(*R) if R else set()
        if mn.startswith("v_mfma"):
            self.kind = "mfma"
            self.defs = R[0]
            self.srcab = R[1] | R[2]
            self.srcc = R[3]
            self.uses = self.srcab | self.srcc
            if "32x32x16" in mn:
                self.passes = 8
            elif "16x16x32" in mn:
                self.passes = 4
            else:
                raise ValueError("unknown mfma " + mn)
        elif mn.startswith("v_"):
            self.kind = "valu"
            self.dpp = "_dpp" in mn
            if mn.startswith("v_nop"):
                pass
            elif mn.startswith(("v_swap", "v_permlane16_swap", "v_permlane32_swap")):
                self.defs = R[0] | R[1]
                self.uses = R[0] | R[1]
            elif mn.startswith(("v_add_co", "v_addc_co", "v_sub_co", "v_subb_co")):
                self.defs = R[0] | R[1]
                self.uses = set().union(*R[2:])
            else:
                self.defs = R[0]
                self.uses = set().union(*R[1:]) if len(R) > 1 else set()
                if mn.startswith(RMW) or self.dpp:
                    self.uses |= R[0]
                assert not mn.startswith("v_cmpx"), "v_cmpx unsupported"
        elif mn.startswith("ds_"):
            self.kind = "ds"
            if mn.startswith(("ds_read", "ds_bpermute", "ds_permute", "ds_swizzle")) or "_rtn" in mn:
                self.defs = R[0]
                self.uses = set().union(*R[1:])
            else:
                self.uses = allr
            if "addtid" in mn:
                self.uses = self.uses | {("s", "m0")}
        elif mn.startswith(("buffer_", "global_")):
            self.kind = "vmem"
            lds = mn.startswith("global_load_lds") or (mn.startswith("buffer_load") and "lds" in mods.split())
            if mn in ("buffer_inv", "buffer_wbl2"):
                pass
            elif lds:
                self.uses = allr | {("s", "m0")}
                self.kind = "dma"
            elif "_load" in mn:
                self.defs = R[0]
                self.uses = set().union(*R[1:])
            elif "_atomic" in mn:
                ret = "sc0" in mods.split()
                if mn.startswith("global_") and ret:
                    self.defs = R[0]
                    self.uses = set().union(*R[1:])
                else:
                    self.uses = allr
                    if ret:
                        self.defs = R[0]
            else:
                self.uses = allr
                if mn.endswith(("x3", "x4")):
                    self.sdata = R[0] if mn.startswith("buffer_") else R[1]
        elif mn.startswith(("s_load", "s_buffer_load", "s_memtime", "s_memrealtime")):
            self.kind = "smem"
            self.defs = R[0]
            self.uses = set().union(*R[1:]) if len(R) > 1 else set()
        elif mn in ("s_branch",) or mn.startswith("s_cbranch"):
            self.kind = "branch"
            self.target = ops[0]
            if "vcc" in mn:
                self.uses = {("s", "vcc")}
            if "exec" in mn:
                self.uses = {("s", "exec")}
        elif mn == "s_waitcnt":
            self.kind = "wait"
        elif mn in ("s_nop", "s_barrier", "s_endpgm", "s_sleep", "s_setprio"):
            self.kind = "misc"
        elif mn.startswith("s_"):
            self.kind = "salu"
            if mn.startswith(("s_cmp", "s_bitcmp")):
                self.uses = allr
            else:
                self.defs = R[0]
                self.uses = set().union(*R[1:]) if len(R) > 1 else set()
                if "saveexec" in mn:
                    self.defs = self.defs | {("s", "exec")}
                if mn.startswith(("s_addk", "s_mulk", "s_bitset")):
                    self.uses |= R[0]
        elif mn.startswith("."):
            self.kind = "directive"
        elif mn in ("@wait",):
            self.kind = "pseudo"
        else:
            raise ValueError("cannot classify: " + self.text)

    def states(self):
        if self.kind in ("label", "directive", "pseudo"):
            return 0
        if self.mn == "s_nop":
            return int(self.ops[0]) + 1
        return 1


def parse_wait(ins):
    t = " ".join(ins.ops) + " " + ins.mods
    vm = re.search(r"vmcnt\((\d+)\)", t)
    lg = re.search(r"lgkmcnt\((\d+)\)", t)
    return (int(vm.group(1)) if vm else None, int(lg.group(1)) if lg else None)


class State:
    def __init__(self):
        self.vm = {}
        self.lg = {}
        self.own = {}

    def copy(self):
        n = State()
        n.own = {k: set(x) for k, x in self.own.items()}
        n.vm = {k: list(x) for k, x in self.vm.items()}
        n.lg = {k: list(x) for k, x in self.lg.items()}
        return n

    def merge(self, o):
        for k, x in o.own.items():
            self.own.setdefault(k, set()).update(x)
        for mine, other in ((self.vm, o.vm), (self.lg, o.lg)):
            for k, x in other.items():
                if k in mine:
                    mine[k][0] = min(mine[k][0], x[0])
                else:
                    mine[k] = list(x)

    def retire(self, vm, lg):
        if vm is not None:
            self.vm = {k: x for k, x in self.vm.items() if x[0] < vm}
        if lg is not None:
            if lg == 0:
                self.lg = {}
            elif not any(x[2] for x in self.lg.values()):
                self.lg = {k: x for k, x in self.lg.items() if x[0] < lg}


class Kernel:
    def __init__(self, name):
        self.name = name
        self.ins = []
        self.nlab = 0
        self.ntok = 0

    def __call__(self, text):
        last = None
        for line in text.split("\n"):
            line = line.strip()
            if not line or line.startswith(";"):
                continue
            i = Ins(line)
            if i.kind in ("vmem", "dma", "ds", "smem"):
                self.ntok += 1
                i.tok = self.ntok
            self.ins.append(i)
            last = i
        return last.tok if last is not None else None

    def lab(self, prefix="L"):
        self.nlab += 1
        return f"{prefix}_{self.name}_{self.nlab}"

    def wait(self, *toks):
        i = Ins("@wait")
        i.tok = [t for x in toks for t in (x if isinstance(x, tuple) else (x,)) if t is not None]
        self.ins.append(i)

    def order(self, *toks):
        i = Ins("@wait")
        i.tok = list(toks)
        i.mods = "order"
        self.ins.append(i)

    def own(self, res, who, check=False):
        i = Ins("@wait")
        i.tok = []
        i.mods = ("own", res, who, check)
        self.ins.append(i)

    def mark(self):
        return len(self.ins)

    def cut(self, start):
        out = self.ins[start:]
        del self.ins[start:]
        return out

    def put(self, lst):
        self.ins.extend(lst)

    def insert_waits(self):
        out = []
        st = State()
        at_label = {}
        reachable = True
        seen, adef = set(), set()
        for i in self.ins:
            if i.kind == "pseudo":
                assert all(t in seen for t in i.tok), "wait on an operation that is not issued yet"
            elif i.tok is not None:
                seen.add(i.tok)
            adef |= {r for r in i.defs if r[0] in "av"}
            bad = {r for r in i.uses if r[0] in "av" and r not in adef and r != ("v", 0)}
            assert not bad, f"use before def {sorted(bad)} in {i.text}"
            if i.kind == "label":
                if i.label in at_label:
                    if reachable:
                        st.merge(at_label[i.label])
                    else:
                        st = at_label[i.label].copy()
                reachable = True
                out.append(i)
                continue
            need_vm = need_lg = None
            if i.kind == "pseudo" and i.mods == "order":
                continue
            if i.kind == "pseudo" and isinstance(i.mods, tuple):
                _, res, who, check = i.mods
                if check:
                    assert who in st.own.get(res, ()), f"{res} was claimed by someone else"
                else:
                    st.own[res] = {who}
                continue
            if i.kind == "pseudo":
                for t in i.tok:
                    if t in st.vm:
                        need_vm = st.vm[t][0] if need_vm is None else min(need_vm, st.vm[t][0])
                    if t in st.lg:
                        need_lg = st.lg[t][0] if need_lg is None else min(need_lg, st.lg[t][0])
            else:
                touch = i.defs | i.uses
                for k, x in st.vm.items():
                    if x[1] & touch:
                        need_vm = x[0] if need_vm is None else min(need_vm, x[0])
                for k, x in st.lg.items():
                    if x[1] & touch:
                        if i.kind == "ds" and not x[2] and not (x[1] & i.uses):
                            continue
                        if i.kind == "smem" and x[1] == i.defs == {("s", 50)}:
                            continue
                        need_lg = x[0] if need_lg is None else min(need_lg, x[0])
            if need_lg is not None and any(x[2] for x in st.lg.values()):
                need_lg = 0
            if need_vm is not None or need_lg is not None:
                w = []
                if need_vm is not None:
                    need_vm = min(need_vm, 63)
                    w.append(f"vmcnt({need_vm})")
                if need_lg is not None:
                    need_lg = min(need_lg, 15)
                    w.append(f"lgkmcnt({need_lg})")
                out.append(Ins("s_waitcnt " + " ".join(w)))
                st.retire(need_vm, need_lg)
            if i.kind == "pseudo":
                continue
            if i.kind == "wait":
                st.retire(*parse_wait(i))
            elif i.kind in ("vmem", "dma"):
                for x in st.vm.values():
                    x[0] += 1
                st.vm[i.tok] = [0, set(i.defs), False]
            elif i.kind in ("ds", "smem"):
                for x in st.lg.values():
                    x[0] += 1
                st.lg[i.tok] = [0, set(i.defs), i.kind == "smem"]
            elif i.kind == "branch":
                if i.target in at_label:
                    at_label[i.target].merge(st)
                else:
                    at_label[i.target] = st.copy()
                if i.mn == "s_branch":
                    reachable = False
            elif i.mn == "s_endpgm":
                reachable = False
            out.append(i)
        self.ins = out

    @staticmethod
    def need(p, c):
        n = 0
        vreg = lambda S: {r for r in S if r[0] in "va"}
        sreg = lambda S: {r for r in S if r[0] == "s"}
        pv = vreg(p.defs)
        if p.kind == "valu":
            isdot = p.mn.startswith("v_dot")
            if c.kind == "mfma" and pv & c.uses:
                n = max(n, 3 if isdot else 2)
            if c.kind == "valu":
                if c.dpp and pv & c.uses:
                    n = max(n, 2)
                if c.mn.startswith("v_permlane") and pv & c.uses:
                    n = max(n, 2)
                if c.mn.startswith(("v_readlane", "v_readfirstlane")) and pv & c.uses:
                    n = max(n, 1)
                if p.mn.startswith(TRANS) and pv & c.uses:
                    n = max(n, 1)
                if "sdwa" in p.mn and pv & (c.uses | c.defs):
                    n = max(n, 1)
                ps = sreg(p.defs)
                if ps & c.uses:
                    n = max(n, 4 if c.mn.startswith(("v_readlane", "v_writelane")) else 2)
            if isdot and c.kind in ("valu", "ds", "vmem", "dma") and pv & (c.uses | c.defs):
                same = c.mn == p.mn
                if same:
                    ab = regs_of(c.ops[1]) | regs_of(c.ops[2])
                    if pv & ab:
                        n = max(n, 3)
                else:
                    n = max(n, 3)
            if c.kind in ("vmem", "dma") and sreg(p.defs) & c.uses:
                n = max(n, 5)
            if c.kind in ("salu", "branch", "smem") and sreg(p.defs) & c.uses:
                n = max(n, 1)
        if p.kind == "mfma":
            P = p.passes
            if c.kind == "mfma":
                if pv & c.srcab:
                    n = max(n, P + 4)
                if pv & c.srcc:
                    if not (pv == c.srcc and P == c.passes):
                        n = max(n, P + 2)
                elif pv & c.defs and not (pv == c.defs and P == c.passes):
                    n = max(n, P + 2)
            elif c.kind in ("valu", "ds", "vmem", "dma"):
                if pv & (c.uses | c.defs):
                    n = max(n, P + 4)
                if c.kind == "valu" and vreg(p.srcc) & c.defs:
                    n = max(n, P - 1)
        if p.sdata and p.sdata & c.defs:
            n = max(n, 2)
        if p.kind == "salu" and ("s", "m0") in p.defs and ("s", "m0") in c.uses and c.kind in ("dma", "ds"):
            n = max(n, 1)
        return n

    def insert_nops(self):
        LIM = 13
        changed = True
        rounds = 0
        while changed:
            changed = False
            rounds += 1
            assert rounds < 20
            ins = self.ins
            jumps = {}
            for idx, i in enumerate(ins):
                if i.kind == "branch":
                    jumps.setdefault(i.target, []).append(idx)
            out = []
            added = {}
            for idx, c in enumerate(ins):
                if c.kind in ("label", "directive", "wait", "misc"):
                    out.append(c)
                    continue
                lack = 0
                stack = [(idx - 1, 0)]
                seen = set()
                while stack:
                    j, d = stack.pop()
                    while j >= 0 and d < LIM:
                        if (j, d) in seen:
                            break
                        seen.add((j, d))
                        p = ins[j]
                        if p.kind == "label":
                            for b in jumps.get(p.label, []):
                                stack.append((b - 1, d + 1 + added.get(b, 0)))
                            j -= 1
                            continue
                        if p.mn in ("s_branch", "s_endpgm"):
                            break
                        n = self.need(p, c)
                        if n > d:
                            lack = max(lack, n - d)
                        d += p.states() + added.get(j, 0)
                        j -= 1
                if lack:
                    out.append(Ins(f"s_nop {lack - 1}"))
                    added[idx] = lack
                    changed = True
                out.append(c)
            self.ins = out

    WIDE = ("v_mov_b32", "v_add_f32", "v_mul_f32", "v_max_f32", "v_min_f32", "v_add_u32", "v_sub_u32", "v_subrev_u32",
            "v_and_b32", "v_or_b32", "v_xor_b32", "v_lshlrev_b32", "v_lshrrev_b32", "v_mul_u32_u24", "v_min_u32",
            "v_max_u32", "v_exp_f32", "v_rcp_f32", "v_rsq_f32", "v_sin_f32", "v_cos_f32", "v_fract_f32",
            "v_cndmask_b32", "v_permlane16_swap_b32", "v_permlane32_swap_b32", "v_cmp_eq_u32", "v_cmp_gt_u32",
            "v_cmp_lt_u32", "v_cmp_ne_u32", "v_cmp_u_f32", "v_cmp_lt_i32", "v_cmp_le_i32", "v_not_b32")

    def sizes(self):
        import subprocess
        txt = '.amdgcn_target "amdgcn-amd-amdhsa--gfx950"\n.text\n' + "\n".join(i.text for i in self.ins) + "\n"
        open("al.s", "w").write(txt)
        subprocess.run(["clang", "-x", "assembler", "-target", "amdgcn-amd-amdhsa", "-mcpu=gfx950",
                        "-c", "al.s", "-o", "al.o"], check=True)
        out = subprocess.run(["llvm-objdump", "-d", "--mcpu=gfx950", "al.o"],
                             capture_output=True, text=True, check=True).stdout
        sz = [4 * len(l.split("//")[1].split(":")[1].split("<")[0].split()) for l in out.splitlines() if "//" in l]
        it = iter(sz)
        res = [0 if i.kind in ("label", "directive") else next(it) for i in self.ins]
        assert next(it, None) is None
        return res

    def align(self, min_free=2, min_nop=6):
        sz = self.sizes()
        ins = self.ins
        out, pc, n = [], 0, len(ins)
        i = 0
        while i < n:
            if sz[i] == 8 and pc % 8 == 4 and (not out or out[-1][1] != 8):
                j = i
                run = 0
                while j < n and sz[j] != 4:
                    run += sz[j] == 8
                    j += 1
                b = len(out) - 1
                while b >= 0 and out[b][1] != 8 and not (out[b][1] == 4 and out[b][0].mn in self.WIDE):
                    b -= 1
                if run >= min_free and b >= 0 and out[b][1] == 4:
                    w = out[b][0]
                    t = w.text.strip()
                    w.text = w.mn + "_e64" + t[len(w.mn):]
                    out[b] = (w, 8)
                    pc += 4
                elif run >= min_nop and not any(x.kind == "mfma" for x in ins[i:j]):
                    out.append((Ins("s_nop 0"), 4))
                    pc += 4
            out.append((ins[i], sz[i]))
            pc += sz[i]
            i += 1
        self.ins = [x for x, _ in out]

    def finish(self):
        self.insert_waits()
        self.insert_nops()
        if getattr(self, "do_align", True):
            self.align()
        return "\n".join(("" if i.kind == "label" else "    ") + i.text for i in self.ins)

    def maxregs(self):
        mv = ma = ms = -1
        for i in self.ins:
            for f, n in i.defs | i.uses:
                if isinstance(n, int):
                    if f == "v":
                        mv = max(mv, n)
                    elif f == "a":
                        ma = max(ma, n)
                    else:
                        ms = max(ms, n)
        return mv, ma, ms


def interleave(main, fill, every=1, per=1, pred=lambda i: i.kind == "mfma", start=0):
    out = []
    fill = list(fill)
    n = 0
    for i in main:
        out.append(i)
        if pred(i):
            n += 1
            if n > start and (n - start) % every == 0:
                out.extend(fill[:per])
                del fill[:per]
    out.extend(fill)
    return out


def kernel_text(k, vgprs=None, agprs=None):
    body = k.finish()
    mv, ma, ms = k.maxregs()
    nv = vgprs if vgprs is not None else mv + 1
    na = agprs if agprs is not None else ma + 1
    assert mv < nv <= 256 and ma < max(na, 1) <= 256 and ms < 102, (mv, ma, ms)
    acc = (nv + 3) // 4 * 4
    tot = acc + na if na > 0 else nv
    txt = f""".text
.globl {k.name}
.p2align 8
.type {k.name},@function
{k.name}:
{body}
"""
    desc = f""".section .rodata,"a"
.p2align 6
.amdhsa_kernel {k.name}
  .amdhsa_next_free_vgpr {tot}
  .amdhsa_next_free_sgpr 102
  .amdhsa_accum_offset {acc}
  .amdhsa_group_segment_fixed_size 0
  .amdhsa_kernarg_size 104
  .amdhsa_user_sgpr_count 2
  .amdhsa_user_sgpr_kernarg_segment_ptr 1
  .amdhsa_system_sgpr_workgroup_id_x 1
.end_amdhsa_kernel
"""
    return txt, desc
```

```python
MB = 1 << 20
S, D, H, DH, N = 2048, 640, 32, 20, 192
WF = 0
WF_SZ = 16 * 4 * 40 * 1024
WOF = WF + WF_SZ
WOF_SZ = 8 * 4 * 25 * 1024
ST = WOF + WOF_SZ
ST_SZ = 16384
SA = ST + 2 * ST_SZ
SA_SZ = 32768
FL = SA + 2 * SA_SZ
FL_SZ = 65536
XSZ = S * D * 2
OB_R = 16 * 4 * 4 * 512 * 16
MK0 = 4 * MB
MK1 = MK0 + 2 * XSZ
OBL = (MK0, MK1 + XSZ)
X1L = (MK0 + XSZ, MK1 + 2 * XSZ)
X2 = MK1
KB = MK1 + 3 * XSZ
KB_PITCH = 4160
DBG = KB + 640 * KB_PITCH
DBG_SZ = 2 * MB
WS_USED = DBG + DBG_SZ
```

```python
from asmlib import *
from layout import *

SX, SW, SWO, SWS, SOUT = 4, 8, 12, 16, 20
sWAVE = 24
sT = 25
P_X, P_W, P_WO, P_U, P_LA, P_AI, P_CR, P_CI, P_LDT, P_DSK, P_OUT, P_DBG, P_WS = range(44, 70, 2)
sHP, sPAR, sBLK, sCB, sOG, sQUAD = 70, 71, 72, 73, 74, 75
sM63 = 76
sHALO = 78
sLO32 = 80
sC = 82
vTID, vLANE = 0, 1
vS0, vL7, vARR, vL0, vPOLL = 2, 4, 5, 6, 7
sI8 = 3
sTRY, sREDO = 38, 39
OOB = 0x40000000
LOG2E = 1.4426950408889634


def f2i(x):
    import struct
    return "0x%08x" % struct.unpack("<I", struct.pack("<f", x))[0]


def srd(n):
    return s(n, 4)


class Regs:
    def __init__(self, start, end=256):
        self.n = start
        self.end = end

    def get(self, c=1, al=None):
        if al is None:
            al = 2 if c > 1 else 1
        self.n = (self.n + al - 1) // al * al
        r = self.n
        self.n += c
        assert self.n <= self.end, "out of registers"
        return r

    def fork(self):
        return Regs(self.n, self.end)


def prologue(k, nwg, end, early=None):
    k(f"""
    s_cmp_ge_u32 s2, {nwg}
    s_cbranch_scc1 {end}
    s_load_dwordx16 s[44:59], s[0:1], 0
    s_load_dwordx8 s[60:67], s[0:1], 64
    s_load_dwordx2 s[68:69], s[0:1], 96
    v_and_b32 v1, 63, v0
    v_lshrrev_b32 v2, 6, v0
    v_readfirstlane_b32 {s(sWAVE)}, v2
    """)
    if early:
        early()
    k(f"""
    s_mov_b32 {s(sM63)}, 0
    s_mov_b32 {s(sM63 + 1)}, 0x80000000
    s_mov_b32 {s(sLO32)}, -1
    s_mov_b32 {s(sLO32 + 1)}, 0
    s_mov_b32 {s(sHALO)}, 0xfe0000fe
    s_mov_b32 {s(sHALO + 1)}, 0xfe0000fe
    """)
    for d, sz in ((SX, XSZ), (SW, 640 * 1920 * 2), (SWO, 640 * 640 * 2), (SWS, WS_USED), (SOUT, XSZ)):
        k(f"s_mov_b32 {s(d + 2)}, {sz}\n s_mov_b32 {s(d + 3)}, 0x20000")
    for d, p in ((SX, P_X), (SW, P_W), (SWO, P_WO), (SWS, P_WS), (SOUT, P_OUT)):
        k(f"s_mov_b32 {s(d)}, {s(p)}\n s_and_b32 {s(d + 1)}, {s(p + 1)}, 0xffff")


STAMPS = {"on": False, "names": []}


def stamp(k, name):
    if STAMPS.get("probe"):
        n = STAMPS.setdefault("seen", {})
        n[name] = n.get(name, 0) + 1
        if name == "first":
            k("s_memrealtime s[40:41]\n s_waitcnt lgkmcnt(0)\n v_mov_b32 v3, s40")
        if (name, n[name]) in STAMPS["probe"]:
            k("s_memrealtime s[40:41]\n s_waitcnt lgkmcnt(0)")
        return
    if not STAMPS["on"]:
        return
    if not hasattr(k, "stamps"):
        k.stamps = []
        k("v_mov_b32 v3, 0")
    k(f"{STAMPS.get('op', 's_memrealtime')} s[40:41]\n s_waitcnt lgkmcnt(0)\n v_writelane_b32 v3, s40, {len(k.stamps)}")
    k.stamps.append(name)


def stamp_flush(k, slot):
    if STAMPS.get("probe"):
        k(f"""
        s_waitcnt vmcnt(0) lgkmcnt(0)
        v_readfirstlane_b32 s41, v3
        v_not_b32 v3, v3
        v_mov_b32 v2, 0
        s_mov_b64 exec, 1
        global_atomic_umax v2, v3, {s(P_DBG, 2)} offset:32 sc1
        L_spin0:
        s_memrealtime s[26:27]
        s_waitcnt lgkmcnt(0)
        s_sub_u32 s26, s26, s41
        s_cmp_lt_u32 s26, 5600
        s_cbranch_scc1 L_spin0
        global_load_dword v3, v2, {s(P_DBG, 2)} offset:32 sc1
        v_not_b32 v3, v3
        v_readfirstlane_b32 s41, v3
        s_sub_u32 s40, s40, s41
        s_lshl_b32 s40, s40, 2
        s_add_u32 s40, s40, 6000
        L_spin:
        s_memrealtime s[26:27]
        s_waitcnt lgkmcnt(0)
        s_sub_u32 s26, s26, s41
        s_cmp_lt_u32 s26, s40
        s_cbranch_scc1 L_spin
        """)
        return
    if not STAMPS["on"]:
        return
    k(f"""
    s_lshl_b32 s40, s2, 2
    s_add_u32 s40, s40, {s(sWAVE)}
    s_lshl_b32 s40, s40, 8
    s_add_u32 s40, s40, {DBG + slot * 262144}
    v_lshlrev_b32 v2, 2, v1
    buffer_store_dword v3, v2, {srd(SWS)}, s40 offen
    """)
    STAMPS["names"].append((slot, k.name, list(k.stamps)))


def roles(k):
    t = sT
    k(f"""
    s_and_b32 {s(t)}, s2, 7
    s_lshr_b32 {s(t + 1)}, s2, 3
    s_and_b32 {s(t + 2)}, {s(t + 1)}, 3
    s_lshr_b32 {s(t + 3)}, {s(t + 1)}, 4
    s_lshl_b32 {s(t + 3)}, {s(t + 3)}, 2
    s_add_u32 {s(sI8)}, {s(t + 2)}, {s(t + 3)}
    s_lshl_b32 {s(t + 2)}, {s(sI8)}, 2
    s_lshr_b32 {s(sHP)}, 0x75206431, {s(t + 2)}
    s_and_b32 {s(sHP)}, {s(sHP)}, 7
    s_and_b32 {s(t + 2)}, {s(t)}, 1
    s_lshl_b32 {s(t + 2)}, {s(t + 2)}, 3
    s_add_u32 {s(sHP)}, {s(sHP)}, {s(t + 2)}
    s_bfe_u32 {s(sPAR)}, {s(t + 1)}, 0x10002
    s_bfe_u32 {s(t + 3)}, {s(t + 1)}, 0x10003
    s_and_b32 {s(sBLK)}, {s(t)}, 6
    s_add_u32 {s(sBLK)}, {s(sBLK)}, {s(t + 3)}
    s_and_b32 {s(sCB)}, {s(t + 1)}, 7
    s_lshr_b32 {s(t + 3)}, {s(t + 1)}, 3
    s_lshl_b32 {s(sOG)}, {s(t)}, 2
    s_add_u32 {s(sOG)}, {s(sOG)}, {s(t + 3)}
    s_mul_i32 {s(sQUAD)}, {s(t)}, 20
    s_add_u32 {s(sQUAD)}, {s(sQUAD)}, {s(t + 1)}
    """)


def divc(k, dq, dr, src, c, mul, tmp_s):
    k(f"""
    v_mul_u32_u24 {v(dq)}, {mul}, {v(src)}
    v_lshrrev_b32 {v(dq)}, 16, {v(dq)}
    v_mul_u32_u24 {v(dr)}, {c}, {v(dq)}
    v_sub_u32 {v(dr)}, {v(src)}, {v(dr)}
    """)


def sdivc(k, dq, dr, src, c):
    mul = (65536 + c - 1) // c
    k(f"""
    s_mul_i32 {s(dq)}, {s(src)}, {mul}
    s_lshr_b32 {s(dq)}, {s(dq)}, 16
    s_mul_i32 {s(dr)}, {s(dq)}, {c}
    s_sub_u32 {s(dr)}, {s(src)}, {s(dr)}
    """)


def prep_issue(k, R, lds0):
    st = {}
    t = sT
    q = R.get()
    k(f"s_min_u32 {s(t + 2)}, s2, 239")
    sdivc(k, t, t + 1, t + 2, 6)
    k(f"""
    s_mul_i32 {s(t + 2)}, {s(t)}, {16 * 3840}
    s_mul_i32 {s(t + 3)}, {s(t + 1)}, 640
    s_add_u32 {s(t + 2)}, {s(t + 2)}, {s(t + 3)}
    s_lshl_b32 {s(t + 3)}, {s(sWAVE)}, 10
    """)
    ld = []
    for e in range(3):
        o = R.get()
        k(f"v_add_u32 {v(o)}, {256 * e}, v0")
        if e == 2:
            k(f"v_min_u32 {v(o)}, 639, {v(o)}")
        k(f"""
        v_mul_u32_u24 {v(q)}, 1639, {v(o)}
        v_lshrrev_b32 {v(q)}, 16, {v(q)}
        v_mul_u32_u24 {v(q)}, {3840 - 640}, {v(q)}
        v_lshl_add_u32 {v(o)}, {v(o)}, 4, {v(q)}
        """)
        ld.append(f"s_add_u32 m0, {s(t + 3)}, {lds0 + 4096 * e}\n buffer_load_dwordx4 {v(o)}, {srd(SW)}, {s(t + 2)} offen lds")
    st.update(ld=ld)
    return st


def rstd_nm(k, sm, sq, t0):
    k(f"""
    v_mul_f32 {v(t0)}, {f2i(1 / 640)}, {v(sm)}
    v_mul_f32 {v(sq)}, {f2i(1 / 640)}, {v(sq)}
    v_fma_f32 {v(sq)}, -{v(t0)}, {v(t0)}, {v(sq)}
    v_max_f32 {v(sq)}, 0, {v(sq)}
    v_add_f32 {v(sq)}, {f2i(1e-5)}, {v(sq)}
    v_rsq_f32 {v(sm)}, {v(sq)}
    v_mul_f32 {v(sq)}, -{v(t0)}, {v(sm)}
    """)


def prep_addr(k, R, lds0, st):
    t = sT
    P, hp, qi, ad, x1, x2 = (R.get() for _ in range(6))
    fr = R.get(12, 4)
    dst = [R.get() for _ in range(3)]
    adr = [R.get() for _ in range(3)]
    k(f"""
    s_lshr_b32 {s(t + 4)}, {s(t + 1)}, 1
    s_and_b32 {s(t + 5)}, {s(t + 1)}, 1
    s_lshl_b32 {s(t + 5)}, {s(t + 5)}, 3
    s_lshl_b32 {s(t + 6)}, {s(t)}, 10
    s_add_u32 {s(t + 6)}, {s(t + 6)}, {WF}
    s_cmp_ge_u32 s2, 240
    s_cselect_b32 {s(t + 6)}, {OOB}, {s(t + 6)}
    v_bfe_u32 {v(x2)}, v0, 2, 2
    v_bfe_u32 {v(x1)}, v0, 1, 1
    v_lshl_add_u32 {v(x1)}, {v(x1)}, 3, {v(x2)}
    v_mul_u32_u24 {v(x1)}, 640, {v(x1)}
    v_and_b32 {v(x2)}, 1, v0
    v_mul_u32_u24 {v(x2)}, 40, {v(x2)}
    v_add_u32 {v(ad)}, {v(x1)}, {v(x2)}
    v_add_u32 {v(ad)}, {lds0}, {v(ad)}
    """)
    for e in range(3):
        k(f"""
        v_lshrrev_b32 {v(P)}, 4, v0
        v_add_u32 {v(P)}, {16 * e}, {v(P)}
        v_cmp_gt_u32 vcc, 40, {v(P)}
        v_min_u32 {v(P)}, 39, {v(P)}
        """)
        divc(k, hp, qi, P, 5, 13108, None)
        k(f"""
        v_mul_u32_u24 {v(x1)}, 80, {v(hp)}
        v_lshl_add_u32 {v(x1)}, {v(qi)}, 3, {v(x1)}
        v_add_u32 {v(adr[e])}, {v(x1)}, {v(ad)}
        v_add_u32 {v(hp)}, {s(t + 5)}, {v(hp)}
        v_cmp_eq_u32 {s(sC, 2)}, 4, {v(qi)}
        v_mov_b32 {v(x1)}, {s(t + 4)}
        v_cndmask_b32 {v(x2)}, {v(qi)}, {v(x1)}, {s(sC, 2)}
        v_cndmask_b32 {v(x1)}, {v(x1)}, 3, {s(sC, 2)}
        v_lshl_add_u32 {v(hp)}, {v(hp)}, 2, {v(x2)}
        v_mul_u32_u24 {v(hp)}, {40 * 1024}, {v(hp)}
        v_lshl_add_u32 {v(hp)}, {v(x1)}, 8, {v(hp)}
        v_and_b32 {v(x1)}, 15, v0
        v_lshl_add_u32 {v(hp)}, {v(x1)}, 4, {v(hp)}
        v_mov_b32 {v(x1)}, {OOB}
        v_cndmask_b32 {v(hp)}, {v(x1)}, {v(hp)}, vcc
        v_add_u32 {v(dst[e])}, {s(t + 6)}, {v(hp)}
        """)
    st.update(fr=fr, dst=dst, adr=adr)


def prep_finish(k, st, sc=""):
    fr, dst, adr = (st[n] for n in ("fr", "dst", "adr"))
    k.wait(*st["toks"])
    k("s_barrier")
    for e in range(3):
        k(f"""
        ds_read_b64_tr_b16 {v(fr + 4 * e, 2)}, {v(adr[e])}
        ds_read_b64_tr_b16 {v(fr + 4 * e + 2, 2)}, {v(adr[e])} offset:{4 * 640}
        """)
    for e in range(3):
        tok = k(f"buffer_store_dwordx4 {v(fr + 4 * e, 4)}, {v(dst[e])}, {srd(SWS)}, 0 offen {sc}")
    return tok


def rows_load(k, R):
    xs = R.get(12, 4)
    q, r, o, x1 = (R.get() for _ in range(4))
    k(f"""
    v_lshrrev_b32 {v(q)}, 5, v0
    v_and_b32 {v(r)}, 31, v0
    v_mul_u32_u24 {v(q)}, 1280, {v(q)}
    v_lshl_add_u32 {v(o)}, {v(r)}, 4, {v(q)}
    v_mov_b32 {v(x1)}, {OOB}
    v_cmp_gt_u32 vcc, 16, {v(r)}
    s_mul_i32 s96, s2, {8 * 1280}
    buffer_load_dwordx4 {v(xs, 4)}, {v(o)}, {srd(SX)}, s96 offen
    v_cndmask_b32 {v(x1)}, {v(x1)}, {v(o)}, vcc
    buffer_load_dwordx4 {v(xs + 4, 4)}, {v(o)}, {srd(SX)}, s96 offen offset:512
    buffer_load_dwordx4 {v(xs + 8, 4)}, {v(x1)}, {srd(SX)}, s96 offen offset:1024
    """)
    return xs


def rows_stats(k, xs, sc=""):
    sm, sq, one, x1 = xs + 12, xs + 13, xs + 14, xs + 15
    k(f"v_mov_b32 {v(one)}, 0x3f803f80\n v_mov_b32 {v(sm)}, 0\n v_mov_b32 {v(sq)}, 0")
    for i in range(12):
        k(f"v_dot2c_f32_bf16 {v(sm)}, {v(xs + i)}, {v(one)}")
        k(f"v_dot2c_f32_bf16 {v(sq)}, {v(xs + i)}, {v(xs + i)}")
    so, x2 = xs, xs + 1
    k(f"""
    v_lshrrev_b32 {v(x1)}, 5, v0
    v_and_b32 {v(x2)}, 3, {v(x1)}
    v_lshrrev_b32 {v(x1)}, 2, {v(x1)}
    """)
    pad = [f"v_lshlrev_b32 {v(x1)}, 3, {v(x1)}", f"v_lshl_add_u32 {v(x1)}, {v(x2)}, 12, {v(x1)}",
           f"v_and_b32 {v(x2)}, 31, v0", f"v_cmp_eq_u32 vcc, 31, {v(x2)}"]
    for sh in (1, 2, 4, 8):
        for r_ in (sm, sq):
            k(f"v_add_f32_dpp {v(r_)}, {v(r_)}, {v(r_)} row_shr:{sh} row_mask:0xf bank_mask:0xf bound_ctrl:0")
        k(pad.pop(0))
    for r_ in (sm, sq):
        k(f"v_add_f32_dpp {v(r_)}, {v(r_)}, {v(r_)} row_bcast:15 row_mask:0xa bank_mask:0xf")
    k(f"""
    v_mov_b32 {v(x2)}, {OOB}
    v_cndmask_b32 {v(so)}, {v(x2)}, {v(x1)}, vcc
    s_lshl_b32 s96, s2, 4
    s_add_u32 s96, s96, {ST}
    """)
    rstd_nm(k, sm, sq, x1)
    return k(f"buffer_store_dwordx2 {v(sm, 2)}, {v(so)}, {srd(SWS)}, s96 offen {sc}")


def wo_prep_issue(k, R, lds0, rnd):
    t = sT
    q, r, o, x1, x2, ad, adw, d0, d4 = (R.get() for _ in range(9))
    k(f"s_sub_u32 {s(t + 8)}, s2, {160 - 96 * rnd}\n s_min_u32 {s(t + 8)}, {s(t + 8)}, 159")
    sdivc(k, t + 4, t + 5, t + 8, 20)
    sdivc(k, t + 6, t + 7, t + 5, 5)
    k(f"""
    s_lshl_b32 {s(t + 3)}, {s(sWAVE)}, 10
    s_lshr_b32 {s(t + 9)}, {s(t + 7)}, 1
    s_mul_i32 {s(t + 9)}, {s(t + 9)}, 20
    s_and_b32 {s(t + 10)}, {s(t + 7)}, 1
    s_lshl_b32 {s(t + 10)}, {s(t + 10)}, 3
    s_add_u32 {s(t + 9)}, {s(t + 9)}, {s(t + 10)}
    s_cmp_eq_u32 {s(t + 7)}, 4
    s_cselect_b32 {s(t + 9)}, 16, {s(t + 9)}
    s_cselect_b32 {s(t + 10)}, 20, 4
    s_mul_i32 {s(t + 11)}, {s(t + 6)}, 160
    s_add_u32 {s(t + 9)}, {s(t + 9)}, {s(t + 11)}
    s_mul_i32 {s(t + 9)}, {s(t + 9)}, 1280
    s_mul_i32 {s(t + 11)}, {s(t + 4)}, 160
    s_add_u32 {s(t + 9)}, {s(t + 9)}, {s(t + 11)}
    """)
    toks = []
    for e in range(2):
        k(f"v_add_u32 {v(o)}, {256 * e}, v0")
        if e:
            k(f"v_min_u32 {v(o)}, 319, {v(o)}")
        divc(k, q, r, o, 10, 6554, None)
        k(f"""
        v_lshrrev_b32 {v(x1)}, 3, {v(q)}
        v_mul_u32_u24 {v(x1)}, 40, {v(x1)}
        v_bfe_u32 {v(x2)}, {v(q)}, 2, 1
        v_mul_u32_u24 {v(x2)}, {s(t + 10)}, {v(x2)}
        v_and_b32 {v(q)}, 3, {v(q)}
        v_add3_u32 {v(q)}, {v(q)}, {v(x1)}, {v(x2)}
        v_mul_u32_u24 {v(q)}, 1280, {v(q)}
        v_lshl_add_u32 {v(o)}, {v(r)}, 4, {v(q)}
        s_add_u32 m0, {s(t + 3)}, {lds0 + 4096 * e}
        """)
        toks.append(k(f"buffer_load_dwordx4 {v(o)}, {srd(SWO)}, {s(t + 9)} offen lds"))
    k(f"""
    v_bfe_u32 {v(x1)}, v0, 4, 2
    v_bfe_u32 {v(x2)}, v0, 2, 2
    v_lshl_add_u32 {v(x1)}, {v(x1)}, 3, {v(x2)}
    v_mul_u32_u24 {v(x1)}, 160, {v(x1)}
    v_and_b32 {v(x2)}, 3, v0
    v_lshl_add_u32 {v(ad)}, {v(x2)}, 3, {v(x1)}
    v_add_u32 {v(ad)}, {lds0}, {v(ad)}
    s_lshl_b32 {s(t + 11)}, {s(sWAVE)}, 5
    v_add_u32 {v(adw)}, {s(t + 11)}, {v(ad)}
    s_mul_i32 {s(t + 8)}, {s(t + 8)}, 5120
    s_add_u32 {s(t + 8)}, {s(t + 8)}, {WOF}
    v_lshl_add_u32 {v(d0)}, v1, 4, {s(t + 8)}
    v_add_u32 {v(x2)}, 4096, {v(d0)}
    v_mov_b32 {v(x1)}, {OOB}
    v_cmp_gt_u32 vcc, 64, v0
    s_sub_u32 {s(t + 11)}, {s(sWAVE)}, {s(t + 6)}
    s_and_b32 {s(t + 11)}, {s(t + 11)}, 3
    s_lshl_b32 {s(t + 11)}, {s(t + 11)}, 10
    v_cndmask_b32 {v(d4)}, {v(x1)}, {v(x2)}, vcc
    v_add_u32 {v(d0)}, {s(t + 11)}, {v(d0)}
    """)
    return dict(toks=toks, ad=ad, adw=adw, d0=d0, d4=d4, fr=R.get(8, 4))


def wo_prep_finish(k, st, sc):
    fr = st["fr"]
    k(f"""
    ds_read_b64_tr_b16 {v(fr, 2)}, {v(st['adw'])}
    ds_read_b64_tr_b16 {v(fr + 2, 2)}, {v(st['adw'])} offset:{4 * 160}
    ds_read_b64_tr_b16 {v(fr + 4, 2)}, {v(st['ad'])} offset:128
    ds_read_b64_tr_b16 {v(fr + 6, 2)}, {v(st['ad'])} offset:{128 + 4 * 160}
    buffer_store_dwordx4 {v(fr, 4)}, {v(st['d0'])}, {srd(SWS)}, 0 offen {sc}
    buffer_store_dwordx4 {v(fr + 4, 4)}, {v(st['d4'])}, {srd(SWS)}, 0 offen {sc}
    """)


def zero_sa(k, R, sc=""):
    R = R.fork()
    z, o = R.get(), R.get()
    k(f"""
    v_mov_b32 {v(z)}, {OOB}
    v_lshlrev_b32 {v(o)}, 2, v0
    v_cmp_gt_u32 vcc, 64, v0
    v_cndmask_b32 {v(o)}, {v(z)}, {v(o)}, vcc
    v_mov_b32 {v(z)}, 0
    s_lshl_b32 {s(97)}, s2, 8
    s_add_u32 {s(97)}, {s(97)}, {SA}
    """)
    return k(f"buffer_store_dword {v(z)}, {v(o)}, {srd(SWS)}, {s(97)} offen {sc}")


K_PITCH = 4160


def kgen_issue(k, R, part):
    t = 96
    prm = R if isinstance(R, int) else R.get(10)
    o = vS0
    k(f"""
    s_min_u32 {s(t)}, {s(sQUAD)}, 159
    s_lshl_b32 {s(t)}, {s(t)}, 2
    s_add_u32 {s(t)}, {s(t)}, {s(sWAVE)}
    s_mul_i32 {s(t + 1)}, {s(t)}, 384
    s_lshl_b32 {s(t)}, {s(t)}, 1
    v_lshl_add_u32 {v(o)}, v1, {2 - part}, {s(t + 1)}
    v_mov_b32 {v(prm + 9)}, {s(t)}
    """)
    for j, p in enumerate((P_LA, P_AI, P_CR, P_CI)):
        if part == 0:
            k(f"global_load_dword {v(prm + j)}, {v(o)}, {s(p, 2)}")
        else:
            k(f"global_load_ushort {v(prm + 4 + j)}, {v(o)}, {s(p, 2)} offset:256")
    if part == 0:
        k(f"global_load_ushort {v(prm + 8)}, {v(prm + 9)}, {s(P_LDT, 2)}")
    else:
        k(f"global_load_ushort {v(prm + 9)}, {v(prm + 9)}, {s(P_DSK, 2)}")
    return prm


def cmul(k, d, x, y, t):
    k(f"v_pk_mul_f32 {v(t, 2)}, {v(x, 2)}, {v(y, 2)} op_sel:[0,0] op_sel_hi:[0,1]")
    k(f"v_pk_fma_f32 {v(d, 2)}, {v(x, 2)}, {v(y, 2)}, {v(t, 2)} op_sel:[1,1,0] op_sel_hi:[1,0,1] neg_lo:[0,1,0]")


def bf16_round(k, d, x):
    k(f"v_cvt_pk_bf16_f32 {v(d)}, {v(x)}, {v(x)}\n v_lshlrev_b32 {v(d)}, 16, {v(d)}")


T_ROWS = [0, 1, 2, 3, 4, 5, 6, 7, 256, 258, 260, None, 260, 262, 264, None,
          512, 516, 520, None, 768, 772, 776, None, 1024, 1032, 1280, 1288, 1536, 1544, 1792, 1800]


KG_ROW = 272
KG_WAVE = 32 * KG_ROW
sKM0 = 37


class KGen:
    def __init__(self, k, R, acc, prm, scr0, kl0, R2):
        self.k, self.prm, self.kl0 = k, prm, kl0
        R = R.fork()
        t = sT
        self.acc = acc
        self.val = R.get(8, 4)
        self.pk = [R2.get() for _ in range(10)]
        self.pend = []
        self.z = [R.get(2) for _ in range(6)]
        self.c0 = R.get(2)
        self.tmp = R.get(2)
        self.m = ra, dt, al, be, x1, x2, x3 = [R2.get() for _ in range(4)] + [199, 215, 215]
        self.npk = 0
        self.lo = min(scr0, 65536 - 3 * KG_WAVE - 16)
        self.off = scr0 - self.lo
        assert self.off + KG_WAVE < 65536
        k(f"""
        s_mul_i32 {s(sKM0)}, {s(sWAVE)}, {KG_WAVE}
        s_add_u32 {s(t)}, {s(sKM0)}, {scr0}
        s_add_u32 {s(sKM0)}, {s(sKM0)}, {self.lo}
        s_mov_b32 m0, {s(sKM0)}
        v_and_b32 {v(x1)}, 31, v1
        v_mul_u32_u24 {v(x1)}, {KG_ROW}, {v(x1)}
        v_lshrrev_b32 {v(x2)}, 5, v1
        v_lshl_add_u32 {v(x1)}, {v(x2)}, 4, {v(x1)}
        v_add_u32 {v(ra)}, {s(t)}, {v(x1)}
        v_lshlrev_b32 {v(dt)}, 16, {v(prm + 8)}
        v_mul_f32 {v(dt)}, {f2i(LOG2E)}, {v(dt)}
        v_exp_f32 {v(dt)}, {v(dt)}
        """)
        bf16_round(k, dt, dt)

    def put(self, x, rows, neg_im):
        k = self.k
        pk = self.pk[self.npk]
        self.npk += 1
        if x is None:
            k(f"v_mov_b32 {v(pk)}, 0x3f80")
        else:
            k(f"v_cvt_pk_bf16_f32 {v(pk)}, {v(x)}, {'-' if neg_im else ''}{v(x + 1)}")
        for r in rows:
            self.pend.append(f"ds_write_addtid_b32 {v(pk)} offset:{self.off + KG_ROW * r}")
        if self.npk == len(self.pk):
            self.flush()

    def flush(self):
        for w in self.pend:
            self.k(w)
        self.pend = []
        self.npk = 0

    def setup(self, c):
        k = self.k
        z1, z2, z4, z8, z16, z256 = self.z
        ra, dt, al, be, x1, x2, x3 = self.m
        la, ai, cr, ci = (self.prm + 4 * (c // 2) + j for j in range(4))
        up = (lambda d, x: f"v_and_b32 {v(d)}, 0xffff0000, {v(x)}") if c == 1 else (lambda d, x: f"v_lshlrev_b32 {v(d)}, 16, {v(x)}")
        e = [z2, z2 + 1, z4]
        f = [z4 + 1, z16, z16 + 1]
        k(f"""
        {up(x1, la)}
        v_mul_f32 {v(x1)}, {f2i(LOG2E)}, {v(x1)}
        v_exp_f32 {v(x1)}, {v(x1)}
        {up(be, ai)}
        v_mul_f32 {v(be)}, {v(be)}, {v(dt)}
        v_mul_f32 {v(be)}, {f2i(0.15915494309189535)}, {v(be)}
        """)
        bf16_round(k, x1, x1)
        k(f"""
        v_mul_f32 {v(al)}, {v(x1)}, {v(dt)}
        v_mul_f32 {v(al)}, {f2i(-LOG2E)}, {v(al)}
        v_mul_f32 {v(e[0])}, {f2i(8.0)}, {v(al)}
        v_mul_f32 {v(f[0])}, {f2i(8.0)}, {v(be)}
        v_mul_f32 {v(e[2])}, {f2i(256.0)}, {v(al)}
        v_mul_f32 {v(f[2])}, {f2i(256.0)}, {v(be)}
        v_fract_f32 {v(f[0])}, {v(f[0])}
        v_fract_f32 {v(f[1])}, {v(be)}
        v_fract_f32 {v(f[2])}, {v(f[2])}
        v_exp_f32 {v(e[0])}, {v(e[0])}
        v_exp_f32 {v(e[1])}, {v(al)}
        v_exp_f32 {v(e[2])}, {v(e[2])}
        """)
        zz = (z8, z1, z256)
        for i in range(3):
            k(f"v_cos_f32 {v(zz[i])}, {v(f[i])}\n v_sin_f32 {v(zz[i] + 1)}, {v(f[i])}")
        k(f"""
        {up(self.c0, cr)}
        {up(self.c0 + 1, ci)}
        v_add_f32 {v(x1)}, {v(dt)}, {v(dt)}
        v_mul_f32 {v(self.c0)}, {v(self.c0)}, {v(x1)}
        v_mul_f32 {v(self.c0 + 1)}, {v(self.c0 + 1)}, {v(x1)}
        """)
        for i in range(3):
            k(f"v_mul_f32 {v(zz[i])}, {v(zz[i])}, {v(e[i])}\n v_mul_f32 {v(zz[i] + 1)}, {v(zz[i] + 1)}, {v(e[i])}")

    def chains(self):
        k, val, tmp = self.k, self.val, self.tmp
        z1, z2, z4, z8, z16, z256 = self.z
        ra = self.m[0]
        self.put(None, [0], False)
        self.put(z8, [1], False)
        prev = z8
        for i in range(2, 32):
            cur = val + 2 * (i % 2)
            cmul(k, cur, prev, z8, tmp)
            self.put(cur, [i], False)
            prev = cur
        self.flush()
        if STAMPS.get("kg"):
            stamp(k, "S")
        for st_ in range(8):
            k(f"ds_read_b128 {a(160 + 4 * st_, 4)}, {v(ra)} offset:{32 * st_}")
        cmul(k, z2, z1, z1, tmp)
        cmul(k, z4, z2, z2, tmp)
        rows = lambda p: [r for r, q in enumerate(T_ROWS) if q == p]
        self.put(self.c0, rows(0), True)
        prev = self.c0
        for p in range(1, 8):
            cur = val + 2 * (p % 2)
            cmul(k, cur, prev, z1, tmp)
            self.put(cur, rows(p), True)
            prev = cur
        base = self.c0
        for n, (b, step, z, cnt) in enumerate([(256, 2, z2, 4), (512, 4, z4, 2), (768, 4, z4, 2), (1024, 8, z8, 1),
                                               (1280, 8, z8, 1), (1536, 8, z8, 1), (1792, 8, z8, 1)]):
            nb = val + 4 + 2 * (n % 2)
            cmul(k, nb, base, z256, tmp)
            self.put(nb, rows(b), True)
            base = prev = nb
            for i in range(1, cnt + 1):
                cur = val + 2 * (i % 2)
                cmul(k, cur, prev, z, tmp)
                self.put(cur, rows(b + step * i), True)
                prev = cur
        self.flush()
        if STAMPS.get("kg"):
            stamp(k, "T")
        for st_ in range(8):
            k(f"ds_read_b128 {a(192 + 4 * st_, 4)}, {v(ra)} offset:{32 * st_}")

    def mfmas(self, zero, fill, dma=()):
        k = self.k
        m = k.mark()
        for st_ in range(8):
            cin = "0" if (zero and st_ == 0) else v(self.acc, 16)
            k(f"v_mfma_f32_32x32x16_bf16 {v(self.acc, 16)}, {a(192 + 4 * st_, 4)}, {a(160 + 4 * st_, 4)}, {cin}")
        main = k.cut(m)
        fill, dma, had = list(fill), list(dma), bool(dma)
        k.put(flat(dma[:1]) + fill[:10])
        del fill[:10], dma[:1]
        for i, e in enumerate(main):
            k.put([e])
            if dma and (i % 2 == 0 or len(dma) > (8 - i) // 2):
                k.put(flat([dma.pop(0)]))
            k.put(fill[:4])
            del fill[:4]
        k.put(flat(dma) + fill)
        if had:
            k(f"s_mov_b32 m0, {s(sKM0)}")


def k_expand(k, acc, dsk, tmp, kl0):
    o, ab, a8, a16, be, x = tmp, tmp + 8, tmp + 9, tmp + 10, tmp + 11, tmp + 12
    t = sT + 8
    m = k.mark()
    k(f"""
    s_mul_i32 {s(t)}, {s(sWAVE)}, {K_PITCH}
    s_add_u32 {s(t)}, {s(t)}, {kl0}
    v_and_b32 {v(ab)}, 31, v1
    v_lshl_add_u32 {v(ab)}, {v(ab)}, 4, {s(t)}
    v_lshrrev_b32 {v(be)}, 5, v1
    v_lshl_add_u32 {v(a8)}, {v(be)}, 3, {v(ab)}
    v_lshl_add_u32 {v(a16)}, {v(be)}, 9, {v(ab)}
    v_lshl_add_u32 {v(ab)}, {v(be)}, 10, {v(ab)}
    v_cmp_eq_u32 vcc, 0, v1
    v_lshlrev_b32 {v(x)}, 16, {v(dsk)}
    v_min_u32 {v(be)}, 15, v1
    v_cndmask_b32 {v(x)}, 0, {v(x)}, vcc
    v_lshl_add_u32 {v(be)}, {v(be)}, 2, {s(t)}
    v_add_f32 {v(acc)}, {v(acc)}, {v(x)}
    v_and_b32 {v(x)}, 1, v1
    v_cmp_eq_u32 vcc, 1, {v(x)}
    v_mov_b32 {v(x)}, 0
    v_cvt_pk_bf16_f32 {v(o)}, {v(acc)}, {v(acc + 1)}
    v_cvt_pk_bf16_f32 {v(o + 1)}, {v(acc + 2)}, {v(acc + 3)}
    v_cvt_pk_bf16_f32 {v(o + 2)}, {v(acc + 4)}, {v(acc + 4)}
    v_cvt_pk_bf16_f32 {v(o + 3)}, {v(acc + 5)}, {v(acc + 6)}
    v_cvt_pk_bf16_f32 {v(o + 4)}, {v(acc + 8)}, {v(acc + 8)}
    v_cvt_pk_bf16_f32 {v(o + 5)}, {v(acc + 8)}, {v(acc + 9)}
    v_cvt_pk_bf16_f32 {v(o + 6)}, {v(acc + 9)}, {v(acc + 9)}
    v_cvt_pk_bf16_f32 {v(o + 7)}, {v(acc + 10)}, {v(acc + 10)}
    ds_write_b32 {v(be)}, {v(x)}
    ds_write_b64 {v(a8)}, {v(o, 2)} offset:64
    ds_write_b64 {v(a8)}, {v(o + 2, 2)} offset:{64 + 512}
    ds_write_b128 {v(a16)}, {v(o + 4, 4)} offset:{64 + 1024}
    """)
    for j in range(2):
        g0, g1 = acc + 12 + 2 * j, acc + 13 + 2 * j
        d = acc + 4 * j
        k(f"""
        v_cndmask_b32 {v(x + 1)}, {v(g0)}, {v(g1)}, vcc
        v_cvt_pk_bf16_f32 {v(d)}, {v(g0)}, {v(g0)}
        v_mov_b32 {v(d + 1)}, {v(d)}
        v_cvt_pk_bf16_f32 {v(d + 2)}, {v(x + 1)}, {v(g1)}
        v_cvt_pk_bf16_f32 {v(d + 3)}, {v(g1)}, {v(g1)}
        ds_write_b128 {v(ab)}, {v(d, 4)} offset:{64 + 2048 + 512 * j}
        """)
    return k.cut(m)


def k_to_global(k, R, kl0):
    R = R.fork()
    t = sT
    ad, go, g2 = R.get(), R.get(), R.get()
    d = R.get(20, 4)
    k(f"""
    s_mul_i32 {s(t)}, {s(sWAVE)}, {K_PITCH}
    s_mul_i32 {s(t + 1)}, {s(sQUAD)}, {4 * K_PITCH}
    s_add_u32 {s(t + 1)}, {s(t + 1)}, {s(t)}
    s_add_u32 {s(t + 1)}, {s(t + 1)}, {KB}
    s_add_u32 {s(t + 2)}, {s(t + 1)}, 4096
    s_add_u32 {s(t)}, {s(t)}, {kl0}
    v_lshlrev_b32 {v(go)}, 4, v1
    v_add_u32 {v(ad)}, {s(t)}, {v(go)}
    v_mov_b32 {v(g2)}, {OOB}
    v_cmp_gt_u32 vcc, 4, v1
    v_cndmask_b32 {v(g2)}, {v(g2)}, {v(go)}, vcc
    s_waitcnt lgkmcnt(0)
    """)
    for e in range(5):
        k(f"ds_read_b128 {v(d + 4 * e, 4)}, {v(ad)} offset:{1024 * e}")
    for e in range(4):
        k(f"buffer_store_dwordx4 {v(d + 4 * e, 4)}, {v(go)}, {srd(SWS)}, {s(t + 1)} offen offset:{1024 * e}")
    k(f"buffer_store_dwordx4 {v(d + 16, 4)}, {v(g2)}, {srd(SWS)}, {s(t + 2)} offen")


XH = 17408
XG = XH + 2176
XT0 = 36352
AT0 = 0
AT_END = AT0 + 4 * 6400
ZR0 = 155648
ON0 = ZR0 + 2048
CS0 = ON0 + 2048
sJ0, sXS, sXH, sWF = 98, 99, 100, 101
sM0 = 90
NEG = f2i(-1e30)


class QState:
    pass


BACKOFF = [4]


def cold(k, fn):
    m = k.mark()
    fn()
    if not hasattr(k, "cold"):
        k.cold = []
    k.cold += k.cut(m)


def retry(k, entry, reload, name, budget=sTRY, count=None, masked=True):
    redo, cont = k.lab("rd"), k.lab("rc")
    k(f"s_cbranch_vccnz {redo}\n {cont}:")

    def f():
        k(f"{redo}:\n s_cmp_eq_u32 {s(budget)}, 0\n s_cbranch_scc1 {cont}\n s_sub_u32 {s(budget)}, {s(budget)}, 1")
        if STAMPS["on"] and count is not None:
            k(f"v_readlane_b32 s40, v3, {48 + count}\n s_add_u32 s40, s40, 1\n v_writelane_b32 v3, s40, {48 + count}")
        k("s_nop 7\n s_nop 7")
        if masked:
            k(f"s_sleep {BACKOFF[0]}\n s_mov_b64 exec, vcc")
        reload()
        k(f"s_mov_b64 exec, -1\n s_waitcnt vmcnt(0) lgkmcnt(0)\n s_branch {entry}")
    cold(k, f)


def spread(main, items, every, start=0):
    out, items, n, full = [], list(items), -start, True

    def scc_live(p):
        for j in main[p:]:
            if j.mn.startswith(("s_cselect", "s_cbranch_scc", "s_addc")):
                return True
            if j.kind == "salu" and not j.mn.startswith(("s_mov", "s_mul", "s_getpc")):
                return False
        return False
    depth = set()
    for p, i in enumerate(main):
        if i.kind == "label" or i.kind == "branch":
            if i.kind == "branch" and any(j.label == i.target for j in main[p:]):
                depth.add(i.target)
            depth.discard(i.label)
            out.append(i)
            continue
        if items and full and n >= every and not depth and not scc_live(p):
            out += flat([items.pop(0)])
            n = 0
        out.append(i)
        n += 1
        if ("s", "exec") in i.defs:
            full = i.text.split(";")[0].strip() == "s_mov_b64 exec, -1"
    return out + flat(items)


def vm_items(lst):
    out, cur = [], []
    for e in lst:
        cur += flat([e])
        if any(i.kind in ("vmem", "dma") for i in flat([e])):
            out.append(cur)
            cur = []
    if cur:
        out.append(cur)
    return out


def grab(k, fn):
    m = k.mark()
    r = fn()
    return k.cut(m), r


def const_init(k, R):
    T = R.fork()
    z = T.get(4, 4)
    ad = T.get()
    k(f"""
    v_mov_b32 {v(z)}, 0
    v_mov_b32 {v(z + 1)}, 0
    v_mov_b32 {v(z + 2)}, 0x3f803f80
    v_mov_b32 {v(z + 3)}, 0x3f803f80
    v_lshlrev_b32 {v(ad)}, 3, v0
    v_add_u32 {v(ad)}, {ZR0}, {v(ad)}
    ds_write_b64 {v(ad)}, {v(z, 2)}
    ds_write_b64 {v(ad)}, {v(z + 2, 2)} offset:2048
    """)


def at_zero(k, R):
    T = R.fork()
    z = T.get(2)
    ad, x1 = T.get(), T.get()
    k(f"""
    v_mov_b32 {v(z)}, 0
    v_mov_b32 {v(z + 1)}, 0
    v_lshrrev_b32 {v(ad)}, 5, v0
    v_mul_u32_u24 {v(ad)}, 1600, {v(ad)}
    v_and_b32 {v(x1)}, 31, v0
    v_min_u32 {v(x1)}, 19, {v(x1)}
    v_lshl_add_u32 {v(ad)}, {v(x1)}, 3, {v(ad)}
    v_add_u32 {v(ad)}, {AT0 + 6400}, {v(ad)}
    ds_write_b64 {v(ad)}, {v(z, 2)}
    """)


def q_setup(k, R):
    q = QState()
    q.cs = R.get(16, 4)
    q.csh = R.get(4, 4)
    q.bc = R.get(4, 4)
    q.bp = R.get(4, 4)
    q.mc = R.get(2)
    q.wq, q.wq3, q.wh, q.a1, q.a2, q.av0, q.av1, q.om, q.orr, q.stm, q.sth, q.hinc = (R.get() for _ in range(12))
    T = R.fork()
    n, h, x1, x2, x3, x4 = (T.get() for _ in range(6))
    t = sT
    k(f"""
    v_and_b32 {v(n)}, 31, v1
    v_lshrrev_b32 {v(h)}, 5, v1
    v_mul_u32_u24 {v(x1)}, 40, {v(n)}
    v_mul_u32_u24 {v(x2)}, 3200, {v(h)}
    v_add_u32 {v(x2)}, {v(x1)}, {v(x2)}
    s_lshl_b32 {s(t)}, {s(sWAVE)}, 3
    s_add_u32 {s(t)}, {s(t)}, {AT0 + 320}
    v_add_u32 {v(q.wq)}, {s(t)}, {v(x2)}
    s_mul_i32 {s(t)}, {s(sWAVE)}, 6400
    s_add_u32 {s(t)}, {s(t)}, {AT0 + 320 + 32}
    v_add_u32 {v(q.wq3)}, {s(t)}, {v(x2)}
    s_lshl_b32 {s(t + 6)}, {s(sPAR)}, 12
    v_lshl_add_u32 {v(q.stm)}, {v(n)}, 3, {s(t + 6)}
    """)
    k(f"""
    v_bfe_u32 {v(x1)}, v1, 2, 1
    v_and_b32 {v(x2)}, 3, v1
    v_lshlrev_b32 {v(x3)}, 13, {v(x1)}
    v_lshl_add_u32 {v(x3)}, {v(x2)}, 3, {v(x3)}
    v_add_u32 {v(q.sth)}, {s(t + 6)}, {v(x3)}
    v_bfe_u32 {v(x3)}, v1, 4, 1
    v_lshl_add_u32 {v(x1)}, {v(x3)}, 1, {v(x1)}
    v_mul_u32_u24 {v(x1)}, 40, {v(x1)}
    v_add_u32 {v(x1)}, {v(x1)}, {v(x2)}
    v_mul_u32_u24 {v(x1)}, 40, {v(x1)}
    v_bfe_u32 {v(x2)}, v1, 3, 1
    v_cmp_eq_u32 {s(sC, 2)}, {v(x2)}, {v(x3)}
    v_lshl_add_u32 {v(x2)}, {v(x2)}, 1, {v(h)}
    v_cmp_eq_u32 vcc, 3, {v(x2)}
    v_mov_b32 {v(x3)}, {s(sWAVE)}
    v_cndmask_b32 {v(x2)}, {v(x2)}, {v(x3)}, vcc
    v_cndmask_b32 {v(x3)}, {v(x3)}, 4, vcc
    v_mul_u32_u24 {v(x2)}, 6400, {v(x2)}
    v_lshl_add_u32 {v(x1)}, {v(x3)}, 3, {v(x1)}
    v_add_u32 {v(x1)}, {v(x1)}, {v(x2)}
    v_add_u32 {v(q.wh)}, {AT0 + 160}, {v(x1)}
    v_mov_b32 {v(x1)}, {XG}
    v_cndmask_b32 {v(q.hinc)}, 0, {v(x1)}, {s(sHALO, 2)}
    """)
    c, g = n, h
    k(f"""
    v_and_b32 {v(c)}, 15, v1
    v_lshrrev_b32 {v(g)}, 4, v1
    s_and_b32 {s(t)}, {s(sWAVE)}, 1
    s_and_b32 {s(t + 1)}, {s(sWAVE)}, 2
    s_mul_i32 {s(t + 2)}, {s(t)}, 3200
    s_mul_i32 {s(t + 3)}, {s(t + 1)}, 320
    s_add_u32 {s(t + 2)}, {s(t + 2)}, {s(t + 3)}
    s_add_u32 {s(t + 2)}, {s(t + 2)}, {AT0}
    v_and_b32 {v(x1)}, 1, v1
    v_mul_u32_u24 {v(x1)}, 1600, {v(x1)}
    v_lshrrev_b32 {v(x2)}, 1, {v(c)}
    v_mul_u32_u24 {v(x3)}, 40, {v(x2)}
    v_add3_u32 {v(x1)}, {v(x1)}, {v(x3)}, {s(t + 2)}
    v_lshl_add_u32 {v(q.a1)}, {v(g)}, 3, {v(x1)}
    v_add_u32 {v(q.a2)}, 32, {v(x1)}
    v_bfe_u32 {v(x1)}, v1, 2, 1
    v_mul_u32_u24 {v(x1)}, 1600, {v(x1)}
    v_lshrrev_b32 {v(x3)}, 3, v1
    v_mul_u32_u24 {v(x3)}, 40, {v(x3)}
    v_add3_u32 {v(x1)}, {v(x1)}, {v(x3)}, {s(t + 2)}
    v_add_u32 {v(x1)}, 12800, {v(x1)}
    v_and_b32 {v(x3)}, 3, v1
    v_lshl_add_u32 {v(q.av0)}, {v(x3)}, 3, {v(x1)}
    v_add_u32 {v(x1)}, 32, {v(x1)}
    v_cmp_eq_u32 vcc, 0, {v(x3)}
    v_mov_b32 {v(x3)}, {ON0}
    v_cndmask_b32 {v(q.av1)}, {v(x3)}, {v(x1)}, vcc
    """)
    k(f"""
    v_and_b32 {v(x1)}, 1, {v(g)}
    v_add_u32 {v(x1)}, {s(t + 1)}, {v(x1)}
    v_lshrrev_b32 {v(x3)}, 2, {v(c)}
    v_lshl_add_u32 {v(x1)}, {v(x1)}, 2, {v(x3)}
    v_and_b32 {v(x2)}, 1, {v(x2)}
    v_lshl_add_u32 {v(x1)}, {v(x2)}, 4, {v(x1)}
    v_and_b32 {v(x2)}, 1, {v(c)}
    v_lshl_add_u32 {v(x1)}, {v(x2)}, 10, {v(x1)}
    s_lshl_b32 {s(t + 5)}, {s(sHP)}, 1
    s_add_u32 {s(t + 5)}, {s(t + 5)}, {s(t)}
    s_lshl_b32 {s(t + 4)}, {s(t + 5)}, 3
    s_add_u32 {s(t + 4)}, {s(t + 4)}, {s(sPAR)}
    s_lshl_b32 {s(t + 4)}, {s(t + 4)}, 13
    v_lshrrev_b32 {v(x2)}, 1, {v(g)}
    v_lshlrev_b32 {v(x2)}, 15, {v(x2)}
    v_lshl_add_u32 {v(x2)}, {v(x1)}, 4, {v(x2)}
    v_add_u32 {v(q.om)}, {s(t + 4)}, {v(x2)}
    s_lshl_b32 {s(t + 4)}, {s(t + 5)}, 2
    s_add_u32 {s(t + 4)}, {s(t + 4)}, {s(sPAR)}
    s_lshl_b32 {s(t + 4)}, {s(t + 4)}, 12
    s_add_u32 {s(t + 4)}, {s(t + 4)}, {OB_R}
    v_lshl_add_u32 {v(q.orr)}, {v(x1)}, 3, {s(t + 4)}
    s_or_b32 {s(t + 4)}, {s(t + 1)}, {s(sBLK)}
    s_cmp_eq_u32 {s(t + 4)}, 0
    s_cselect_b64 {s(sM0, 2)}, -1, 0
    """)
    k(f"""
    v_lshlrev_b32 {v(x1)}, 2, {v(g)}
    v_sub_u32 {v(x1)}, {v(c)}, {v(x1)}
    v_mov_b32 {v(x4)}, {NEG}
    """)
    for i in range(4):
        k(f"""
        v_subrev_u32 {v(x2)}, {i}, {v(x1)}
        v_cmp_lt_u32 vcc, 7, {v(x2)}
        v_cndmask_b32 {v(q.bc + i)}, 0, {v(x4)}, vcc
        v_cmp_lt_i32 vcc, -9, {v(x2)}
        v_cndmask_b32 {v(q.bp + i)}, 0, {v(x4)}, vcc
        v_cmp_le_i32 vcc, 0, {v(x2)}
        v_mov_b32 {v(x3)}, {'0xffff0000' if i & 1 else '0xffff'}
        v_cndmask_b32 {v(x3)}, 0, {v(x3)}, vcc
        """)
        if i & 1:
            k(f"v_or_b32 {v(q.mc + i // 2)}, {v(q.mc + i // 2)}, {v(x3)}")
        else:
            k(f"v_mov_b32 {v(q.mc + i // 2)}, {v(x3)}")
    return q


def x_addr(k, R, layer, T=None):
    x = QState()
    x.layer = layer
    x.dm = [R.get() for _ in range(4)]
    x.dh, x.rm, x.rh = R.get(), R.get(), R.get()
    T = T or R.fork()
    x1, x2, x3 = T.get(), T.get(), T.get()
    t = sT
    if layer == 0:
        k(f"""
        s_and_b32 {s(t)}, {s(sWAVE)}, 1
        s_lshl_b32 {s(t)}, {s(t)}, 6
        s_and_b32 {s(t + 1)}, {s(sWAVE)}, 2
        s_add_u32 {s(t)}, {s(t)}, {s(t + 1)}
        s_mul_i32 {s(t)}, {s(t)}, 1280
        v_lshrrev_b32 {v(x1)}, 4, v1
        v_and_b32 {v(x2)}, 15, v1
        v_xor_b32 {v(x2)}, {v(x1)}, {v(x2)}
        v_lshlrev_b32 {v(x2)}, 4, {v(x2)}
        v_mul_u32_u24 {v(x3)}, 5120, {v(x1)}
        v_add3_u32 {v(x.dm[0])}, {v(x2)}, {v(x3)}, {s(t)}
        s_and_b32 {s(t)}, {s(sWAVE)}, 1
        s_lshl_b32 {s(t)}, {s(t)}, 3
        s_add_u32 {s(t)}, {s(t)}, {s(t + 1)}
        s_mul_i32 {s(t)}, {s(t)}, 1280
        v_add3_u32 {v(x.dh)}, {v(x2)}, {v(x3)}, {s(t)}
        v_lshrrev_b32 {v(x2)}, 5, v1
        v_and_b32 {v(x1)}, 3, v1
        v_xor_b32 {v(x3)}, {v(x1)}, {v(x2)}
        v_lshlrev_b32 {v(x3)}, 4, {v(x3)}
        v_lshl_add_u32 {v(x3)}, {v(x1)}, 8, {v(x3)}
        v_bfe_u32 {v(x1)}, v1, 2, 3
        v_mul_u32_u24 {v(x1)}, 1088, {v(x1)}
        v_add_u32 {v(x.rm)}, {v(x1)}, {v(x3)}
        v_and_b32 {v(x1)}, 1, v1
        v_xor_b32 {v(x3)}, {v(x1)}, {v(x2)}
        v_lshlrev_b32 {v(x3)}, 4, {v(x3)}
        v_lshl_add_u32 {v(x3)}, {v(x1)}, 8, {v(x3)}
        v_bfe_u32 {v(x1)}, v1, 1, 2
        v_mul_u32_u24 {v(x1)}, 544, {v(x1)}
        v_add_u32 {v(x3)}, {v(x1)}, {v(x3)}
        """)
        step = 4 * 5120 - 1088
    else:
        k(f"""
        s_lshl_b32 {s(t)}, {s(sWAVE)}, 17
        v_lshrrev_b32 {v(x1)}, 5, v1
        v_lshl_add_u32 {v(x1)}, {v(x1)}, 14, {s(t)}
        v_bfe_u32 {v(x2)}, v1, 4, 1
        v_lshl_add_u32 {v(x1)}, {v(x2)}, 13, {v(x1)}
        v_and_b32 {v(x2)}, 15, v1
        v_lshl_add_u32 {v(x.dm[0])}, {v(x2)}, 4, {v(x1)}
        v_bfe_u32 {v(x1)}, v1, 2, 3
        v_lshl_add_u32 {v(x1)}, {v(x1)}, 14, {s(t)}
        v_bfe_u32 {v(x2)}, v1, 1, 1
        v_lshl_add_u32 {v(x1)}, {v(x2)}, 13, {v(x1)}
        v_and_b32 {v(x2)}, 1, v1
        v_lshl_add_u32 {v(x.dh)}, {v(x2)}, 4, {v(x1)}
        v_lshrrev_b32 {v(x2)}, 5, v1
        v_and_b32 {v(x1)}, 31, v1
        v_lshlrev_b32 {v(x1)}, 3, {v(x1)}
        v_lshl_add_u32 {v(x.rm)}, {v(x2)}, 10, {v(x1)}
        v_and_b32 {v(x1)}, 7, v1
        v_lshlrev_b32 {v(x1)}, 3, {v(x1)}
        v_lshl_add_u32 {v(x3)}, {v(x2)}, 7, {v(x1)}
        """)
        step = 32768 - 1024
    for d in range(1, 4):
        k(f"v_add_u32 {v(x.dm[d])}, {step * d}, {v(x.dm[0])}")
    k(f"""
    v_add_u32 {v(x3)}, {XT0 + XH}, {v(x3)}
    v_and_b32 {v(x1)}, 31, v1
    v_cmp_eq_u32 vcc, 0, {v(x1)}
    v_cmp_eq_u32 {s(sC, 2)}, 24, {v(x1)}
    s_or_b64 vcc, vcc, {s(sC, 2)}
    v_mov_b32 {v(x1)}, {ZR0}
    v_mov_b32 {v(x2)}, {ON0}
    v_cndmask_b32 {v(x1)}, {v(x1)}, {v(x2)}, vcc
    v_cndmask_b32 {v(x.rh)}, {v(x1)}, {v(x3)}, {s(sHALO, 2)}
    """)
    return x


def x_bases(k, x, chunk):
    t = sT
    k(f"""
    s_lshl_b32 {s(t)}, {s(sBLK)}, 5
    s_add_u32 {s(t)}, {s(t)}, {256 * chunk}
    s_sub_u32 {s(t + 1)}, {s(t)}, 4
    s_max_i32 {s(t + 1)}, {s(t + 1)}, 0
    """)
    if x.layer == 0:
        k(f"""
        s_mul_i32 {s(t + 2)}, {s(sPAR)}, 1280
        s_mul_i32 {s(sXS)}, {s(t)}, 5120
        s_mul_i32 {s(sXH)}, {s(t + 1)}, 5120
        s_mul_i32 {s(92)}, {s(sWAVE)}, 4352
        s_mul_i32 {s(93)}, {s(sWAVE)}, 544
        """)
    else:
        k(f"""
        s_lshl_b32 {s(t + 2)}, {s(sPAR)}, 12
        s_add_u32 {s(t + 2)}, {s(t + 2)}, {X2}
        s_lshl_b32 {s(sXS)}, {s(t)}, 3
        s_lshl_b32 {s(sXH)}, {s(t + 1)}, 3
        s_lshl_b32 {s(92)}, {s(sWAVE)}, 12
        s_lshl_b32 {s(93)}, {s(sWAVE)}, 9
        """)
    k(f"s_add_u32 {s(sXS)}, {s(sXS)}, {s(t + 2)}\n s_add_u32 {s(sXH)}, {s(sXH)}, {s(t + 2)}")


def x_dma_items(k, x, G, sc="", restore=None, own_m0=False):
    rs = srd(SX) if x.layer == 0 else srd(SWS)
    step = 256 if x.layer == 0 else 32 * 16384
    pitch = 1088 if x.layer == 0 else 1024
    items = []
    m = k.mark()
    for d in range(4):
        if d == 0 or (restore and d == 2) or own_m0:
            k(f"s_add_u32 m0, s92, {XT0 + G * XG}")
        k(f"buffer_load_dwordx4 {v(x.dm[d])}, {rs}, {s(sXS)} offen offset:{pitch * d} {sc} lds")
        if restore and d % 2 == 0:
            continue
        if restore:
            k(f"s_mov_b32 m0, {s(restore)}")
        items.append(k.cut(m))
    k(f"s_add_u32 m0, s93, {XT0 + G * XG + XH}\n s_add_u32 {s(sXS)}, {s(sXS)}, {step}")
    k(f"s_mov_b64 exec, {s(sLO32, 2)}")
    tok = k(f"buffer_load_dwordx4 {v(x.dh)}, {rs}, {s(sXH)} offen {sc} lds")
    k(f"s_mov_b64 exec, -1\n s_add_u32 {s(sXH)}, {s(sXH)}, {step}")
    if restore:
        k(f"s_mov_b32 m0, {s(restore)}")
    items.append(k.cut(m))
    return items, tok


def flat(items):
    out = []
    for e in items:
        out += e if isinstance(e, list) else [e]
    return out


def x_dma(k, x, G, sc=""):
    items, tok = x_dma_items(k, x, G, sc)
    k.put(flat(items))
    return tok


def w_addr(k, R):
    wa = R.get()
    T = R.fork()
    x1, x2 = T.get(), T.get()
    t = sT
    k(f"""
    v_bfe_u32 {v(x1)}, v1, 3, 2
    v_and_b32 {v(x2)}, {s(sWAVE)}, {v(x1)}
    v_cmp_eq_u32 vcc, 3, {v(x2)}
    v_lshrrev_b32 {v(x2)}, 5, v1
    v_lshl_add_u32 {v(x1)}, {v(x1)}, 1, {v(x2)}
    v_and_b32 {v(x2)}, 7, v1
    v_lshl_add_u32 {v(x1)}, {v(x1)}, 3, {v(x2)}
    v_lshlrev_b32 {v(wa)}, 4, {v(x1)}
    v_mov_b32 {v(x1)}, {OOB}
    v_cndmask_b32 {v(wa)}, {v(wa)}, {v(x1)}, vcc
    s_lshl_b32 {s(sWF)}, {s(sHP)}, 2
    s_add_u32 {s(sWF)}, {s(sWF)}, {s(sWAVE)}
    s_mul_i32 {s(sWF)}, {s(sWF)}, {40 * 1024}
    s_add_u32 {s(sWF)}, {s(sWF)}, {WF}
    """)
    return wa


def w_load(k, wa, lo, hi, sc=""):
    for ks in range(lo, hi):
        j = ks
        k(f"buffer_load_dwordx4 {a(4 * ks, 4)}, {v(wa)}, {srd(SWS)}, {s(sWF)} offen offset:{1024 * (j % 4)} {sc}")
        if j % 4 == 3:
            k(f"s_add_u32 {s(sWF)}, {s(sWF)}, 4096")


def q_stats_load(k, q, st, layer, chunk, sc=""):
    t = 94
    k(f"""
    s_lshl_b32 {s(sJ0)}, {s(sBLK)}, 5
    s_add_u32 {s(sJ0)}, {s(sJ0)}, {256 * chunk}
    s_sub_u32 {s(t + 1)}, {s(sJ0)}, 4
    s_max_i32 {s(t + 1)}, {s(t + 1)}, 0
    s_lshl_b32 {s(t)}, {s(sJ0)}, 3
    s_lshl_b32 {s(t + 1)}, {s(t + 1)}, 3
    s_add_u32 {s(t)}, {s(t)}, {ST + layer * ST_SZ}
    s_add_u32 {s(t + 1)}, {s(t + 1)}, {ST + layer * ST_SZ}
    s_add_u32 {s(t + 2)}, {s(t)}, 8192
    buffer_load_dwordx2 {v(st, 2)}, {v(q.stm)}, {srd(SWS)}, {s(t)} offen {sc}
    buffer_load_dwordx2 {v(st + 2, 2)}, {v(q.stm)}, {srd(SWS)}, {s(t + 2)} offen {sc}
    """)
    q.st_tok = (k(f"buffer_load_dwordx2 {v(st + 4, 2)}, {v(q.sth)}, {srd(SWS)}, {s(t + 1)} offen {sc}"), layer, chunk)


def cost(e):
    c = 0
    for i in (e if isinstance(e, list) else [e]):
        c += 0 if i.kind in ("label", "pseudo") else (3 if i.kind in ("vmem", "dma") else 1)
    return c


def q_regs(R):
    g = QState()
    g.acc = R.get(32, 4)
    g.acch = R.get(4, 4)
    g.pre = R.get(36, 4)
    g.st = R.get(6)
    g.fr = R.get(36, 4)
    g.ma = [R.get(), R.get()]
    g.ha = R.get()
    return g


def q_colsum(k, q, g):
    x1, x2 = g.pre + 16, g.pre + 17
    t = sT + 6
    items = []
    m = k.mark()
    k(f"""
    s_lshl_b32 {s(t)}, {s(sWAVE)}, 7
    s_add_u32 {s(t)}, {s(t)}, {CS0}
    v_bfe_u32 {v(x1)}, v1, 3, 1
    v_lshrrev_b32 {v(x2)}, 4, v1
    v_lshl_add_u32 {v(x1)}, {v(x1)}, 2, {v(x2)}
    v_lshl_add_u32 {v(x1)}, {v(x1)}, 4, {s(t)}
    v_lshrrev_b32 {v(x2)}, 5, v1
    v_lshl_add_u32 {v(x2)}, {v(x2)}, 4, {s(t)}
    """)
    early = k.cut(m)
    k(f"""
    s_mov_b32 exec_lo, 0x01010101
    s_mov_b32 exec_hi, 0x01010101
    ds_write_b128 {v(x1)}, {v(g.acch, 4)}
    s_mov_b64 exec, -1
    """)
    items.append(k.cut(m))
    k(f"ds_read_b128 {v(q.csh, 4)}, {v(x1)}")
    for gm in range(4):
        k(f"ds_read_b128 {v(q.cs + 4 * gm, 4)}, {v(x2)} offset:{32 * gm}")
    return early, items + k.cut(m)


def q_pre(k, q, g, part):
    if part == 0:
        for i in range(4):
            k(f"v_mul_f32 {v(g.pre + 32 + i)}, {v(q.csh + i)}, {v(g.st + 5)}")
    for i in range(16):
        k(f"v_mul_f32 {v(g.pre + 16 * part + i)}, {v(q.cs + i)}, {v(g.st + 2 * part + 1)}")


def q_emit(k, q, g, part, packed):
    def quad(r, p, stp, ad, off):
        d = r
        if packed:
            for j in (0, 2):
                k(f"v_pk_fma_f32 {v(r + j, 2)}, {v(r + j, 2)}, {v(stp, 2)}, {v(p + j, 2)} op_sel_hi:[1,0,1]")
        else:
            for j in range(4):
                k(f"v_fma_f32 {v(r + j)}, {v(r + j)}, {v(stp)}, {v(p + j)}")
        k(f"v_cvt_pk_bf16_f32 {v(d)}, {v(r)}, {v(r + 1)}\n v_cvt_pk_bf16_f32 {v(d + 1)}, {v(r + 2)}, {v(r + 3)}")
        wr.append(f"ds_write_b64 {v(ad)}, {v(d, 2)} offset:{off}")
        if len(wr) == 2:
            k("\n".join(wr))
            wr.clear()
    wr = []
    if part == 0:
        quad(g.acch, g.pre + 32, g.st + 4, q.wh, 0)
    for gm in range(4):
        quad(g.acc + 16 * part + 4 * gm, g.pre + 16 * part + 4 * gm, g.st + 2 * part,
             q.wq if gm < 3 else q.wq3, (6400 * gm if gm < 3 else 0) + 1600 * part)
    if wr:
        k("\n".join(wr))


def q_gemm(k, q, x, g, gtok, first=False, pre={}, side={}, bars=(0, 1, 2, 3), vote=False, alu={}):
    bundles = [[("h", s_), ("0", s_), ("1", s_)] for s_ in range(32)]
    bundles += [[("h", s_), ("0", s_)] for s_ in range(32, 40)]
    bundles += [[("1", s_), ("1", s_ + 1)] for s_ in range(32, 40, 2)]
    buf, nb = {}, 0
    for b in bundles:
        for op in b:
            buf[op] = g.fr + 4 * (nb % 9)
            nb += 1

    def reads(b):
        m = k.mark()
        tok = None
        for kind, ks in bundles[b]:
            j = ks % 8
            f = buf[(kind, ks)]
            if x.layer == 0:
                if kind == "h":
                    tok = k(f"ds_read_b128 {v(f, 4)}, {v(g.ha)} offset:{32 * j}")
                else:
                    tok = k(f"ds_read_b128 {v(f, 4)}, {v(g.ma[j & 1])} offset:{8704 * int(kind) + 64 * (j >> 1)}")
            else:
                for d in range(2):
                    if kind == "h":
                        tok = k(f"ds_read_b64 {v(f + 2 * d, 2)}, {v(g.ha)} offset:{256 * j + 64 * d}")
                    else:
                        tok = k(f"ds_read_b64 {v(f + 2 * d, 2)}, {v(g.ma[0])} offset:{2048 * j + 512 * d + 256 * int(kind)}")
        return k.cut(m), tok

    k(f"v_add_u32 {v(g.ma[0])}, {XT0}, {v(x.rm)}\n v_mov_b32 {v(g.ha)}, {v(x.rh)}")
    if x.layer == 0:
        k(f"v_xor_b32 {v(g.ma[1])}, 32, {v(g.ma[0])}")
    if -1 in pre:
        pre[-1]()
    k.wait(gtok[0])
    k("s_barrier")
    if "first" in pre:
        pre["first"]()
    rtok = {}
    for b in range(2):
        lst, rtok[b] = reads(b)
        k.put(lst)
    if first:
        early, cs_items = q_colsum(k, q, g)
        tail = cs_items + grab(k, lambda: (q_pre(k, q, g, 0), q_emit(k, q, g, 0, False), q_pre(k, q, g, 1)))[0]
        late = {30: early, 40: tail}
    else:
        late = {30: grab(k, lambda: (q_pre(k, q, g, 0), q_pre(k, q, g, 1)))[0],
                40: grab(k, lambda: q_emit(k, q, g, 0, False))[0]}
    qa, qv, hold = [], [], 0
    for b, ops in enumerate(bundles):
        G, j = divmod(b, 8)
        if b < 40 and j == 6:
            if G in bars:
                if G in pre:
                    pre[G]()
                if G < 4:
                    k.wait(gtok[G + 1])
                k("s_barrier")
        if b in side:
            qv += vm_items(side[b]())
        if b in alu:
            qa += alu[b]()
        if b in late:
            if b == (40 if first else 30):
                k.order(q.st_tok[0])
            if b == 40:
                k.put(flat(qa))
                qa = []
            qa += late[b]
        rd = []
        if b < 32 and j == 6:
            m = k.mark()
            k(f"v_add_u32 {v(g.ha)}, {v(q.hinc)}, {v(g.ha)}\n v_add_u32 {v(g.ma[0])}, {XG}, {v(g.ma[0])}")
            if x.layer == 0:
                k(f"v_add_u32 {v(g.ma[1])}, {XG}, {v(g.ma[1])}")
            rd += k.cut(m)
        if b + 2 < len(bundles):
            lst, rtok[b + 2] = reads(b + 2)
            rd += lst
        k.wait(rtok[b])
        hold = max(hold - sum(16 if o_[0] == "h" else 32 for o_ in ops), -16)
        for i, (kind, ks) in enumerate(ops):
            if kind == "h":
                d, mn, cap = v(g.acch, 4), "16x16x32", 1
            else:
                d, mn, cap = v(g.acc + 16 * int(kind), 16), "32x32x16", 5
            k(f"v_mfma_f32_{mn}_bf16 {d}, {a(4 * ks, 4)}, {v(buf[(kind, ks)], 4)}, {'0' if ks == 0 else d}")
            if i == len(ops) - 1:
                take = len(rd)
                cap -= 1
            elif kind == "h":
                take = min(len(rd), 1)
            else:
                take = (len(rd) + 1) // 2
            k.put(rd[:take])
            del rd[:take]
            cap -= take
            if i == len(ops) - 1 and qv and hold <= 0:
                e = qv.pop(0)
                k.put(e)
                cap -= len(e)
                hold += 70 * sum(i_.kind in ("vmem", "dma") for i_ in e)
            if b >= 30 and kind != "h":
                cap = max(cap, 2)
            if b == 40 and i == 0:
                continue
            while qa and cap > 0:
                e = qa.pop(0)
                cap -= cost(e)
                k.put(flat([e]))
    k.put(flat(qa))
    q_emit(k, q, g, 1, True)
    if vote:
        k(f"""
        v_cmp_u_f32 vcc, {v(g.acc + 2)}, {v(g.acch + 2)}
        v_cmp_u_f32 {s(sC, 2)}, {v(g.acc + 18)}, {v(g.acc + 18)}
        s_lshl_b32 {s(sT)}, {s(sWAVE)}, 2
        s_add_u32 {s(sT)}, {s(sT)}, {CS0 + 512}
        s_or_b64 vcc, vcc, {s(sC, 2)}
        s_cselect_b32 {s(sT + 1)}, 1, 0
        v_mov_b32 {v(g.ma[0])}, {s(sT)}
        v_mov_b32 {v(g.ma[1])}, {s(sT + 1)}
        ds_write_b32 {v(g.ma[0])}, {v(g.ma[1])}
        """)
    k("s_waitcnt lgkmcnt(0)")
    k("s_barrier")
    return qv


def wd_setup(k, R, kl0):
    w = QState()
    w.base = [kl0, XT0, XT0 + XG]
    w.dm = [R.get() for _ in range(4)]
    w.ra = [R.get() for _ in range(3)]
    x1, x2, x3 = w.ra
    t = sT
    k(f"""
    s_mul_i32 {s(t)}, {s(sWAVE)}, {16 * 3840}
    s_mul_i32 {s(t + 1)}, {s(sHP)}, 80
    s_add_u32 {s(t)}, {s(t)}, {s(t + 1)}
    v_lshrrev_b32 {v(x1)}, 4, v1
    v_sub_u32 {v(x2)}, v1, {v(x1)}
    v_and_b32 {v(x2)}, 15, {v(x2)}
    v_cmp_eq_u32 vcc, 15, {v(x2)}
    v_mul_u32_u24 {v(x3)}, 13108, {v(x2)}
    v_lshrrev_b32 {v(x3)}, 16, {v(x3)}
    v_mul_u32_u24 {v(x3)}, {1280 - 80}, {v(x3)}
    v_lshl_add_u32 {v(x2)}, {v(x2)}, 4, {v(x3)}
    v_mul_u32_u24 {v(x1)}, 3840, {v(x1)}
    v_add3_u32 {v(x1)}, {v(x1)}, {v(x2)}, {s(t)}
    v_mov_b32 {v(x2)}, {OOB}
    v_cndmask_b32 {v(w.dm[0])}, {v(x1)}, {v(x2)}, vcc
    s_mov_b32 {s(sWF)}, 0
    s_lshl_b32 s43, {s(sWAVE)}, 12
    """)
    for d in range(1, 4):
        k(f"v_add_u32 {v(w.dm[d])}, {d * (4 * 3840 - 1024)}, {v(w.dm[0])}")
    k(f"""
    s_lshl_b32 {s(t)}, {s(sWAVE)}, 3
    s_mul_i32 {s(t + 1)}, {s(sWAVE)}, 80
    s_add_u32 {s(t + 1)}, {s(t + 1)}, 32
    v_bfe_u32 {v(x1)}, v1, 4, 1
    v_bfe_u32 {v(x2)}, v1, 1, 1
    v_lshl_add_u32 {v(x1)}, {v(x1)}, 1, {v(x2)}
    v_cmp_eq_u32 vcc, 3, {v(x1)}
    v_mul_u32_u24 {v(x1)}, 80, {v(x1)}
    v_add_u32 {v(x1)}, {s(t)}, {v(x1)}
    v_mov_b32 {v(x2)}, {s(t + 1)}
    v_cndmask_b32 {v(x1)}, {v(x1)}, {v(x2)}, vcc
    v_and_b32 {v(x2)}, 1, v1
    v_mul_u32_u24 {v(x2)}, 40, {v(x2)}
    v_add_u32 {v(x1)}, {v(x1)}, {v(x2)}
    v_min_u32 {v(x1)}, 240, {v(x1)}
    v_bfe_u32 {v(x2)}, v1, 2, 2
    v_lshl_add_u32 {v(x1)}, {v(x2)}, 4, {v(x1)}
    v_and_b32 {v(x1)}, 255, {v(x1)}
    v_lshrrev_b32 {v(x3)}, 5, v1
    v_lshl_add_u32 {v(x2)}, {v(x3)}, 3, {v(x2)}
    v_lshl_add_u32 {v(x1)}, {v(x2)}, 8, {v(x1)}
    v_add_u32 {v(w.ra[2])}, {w.base[2]}, {v(x1)}
    v_add_u32 {v(w.ra[1])}, {w.base[1]}, {v(x1)}
    v_add_u32 {v(w.ra[0])}, {w.base[0]}, {v(x1)}
    """)
    return w


def wd_dma(k, w, j):
    k(f"s_add_u32 m0, s43, {w.base[j % 3]}")
    for d in range(4):
        tok = k(f"buffer_load_dwordx4 {v(w.dm[d])}, {srd(SW)}, {s(sWF)} offen offset:{1024 * d} lds")
    k(f"s_add_u32 {s(sWF)}, {s(sWF)}, {64 * 3840}")
    return tok


def q_gemm_first(k, q, x, g, w, fr, wt, xt, pre, post, vm, chunk):
    k(f"""
    v_add_u32 {v(g.ma[0])}, {XT0 + 2 * XG}, {v(x.rm)}
    v_lshl_add_u32 {v(g.ha)}, {v(q.hinc)}, 1, {v(x.rh)}
    v_xor_b32 {v(g.ma[1])}, 32, {v(g.ma[0])}
    """)
    for j in range(10):
        if j in (2, 4, 6, 8):
            n = -2 if j == 6 else 1
            k(f"""
            v_mad_i32_i24 {v(g.ha)}, {v(q.hinc)}, {n}, {v(g.ha)}
            v_add_u32 {v(g.ma[0])}, {n * XG}, {v(g.ma[0])}
            v_add_u32 {v(g.ma[1])}, {n * XG}, {v(g.ma[1])}
            """)
        if j in pre:
            pre[j]()
        if STAMPS.get("r") and j in (0, 3, 5):
            stamp(k, f"p{j}")
        k.wait(wt[j], xt[j // 2])
        k("s_barrier")
        if STAMPS.get("r") and j in (0, 3, 5):
            stamp(k, f"b{j}")
        for i in range(4):
            ks = 4 * j + i
            jj = ks % 8
            for e in range(2):
                k(f"ds_read_b64_tr_b16 {a(4 * ks + 2 * e, 2)}, {v(w.ra[j % 3])} offset:{4096 * i + 1024 * e}")
            for e in range(2):
                k(f"ds_read_b128 {v(fr[i] + 4 + 4 * e, 4)}, {v(g.ma[jj & 1])} offset:{8704 * e + 64 * (jj >> 1)}")
            k(f"ds_read_b128 {v(fr[i], 4)}, {v(g.ha)} offset:{32 * jj}")
            if i == 2:
                if j + 2 < 10:
                    wt[j + 2] = wd_dma(k, w, j + 2)
                if j in post:
                    post[j]()
        if STAMPS.get("r") and j in (3,):
            stamp(k, f"r{j}")
        items = vm_items(vm[j]()) if j in vm else []
        for i in range(4):
            ks = 4 * j + i
            k(f"v_mfma_f32_16x16x32_bf16 {v(g.acch, 4)}, {a(4 * ks, 4)}, {v(fr[i], 4)}, {'0' if ks == 0 else v(g.acch, 4)}")
            for e in range(2):
                d = v(g.acc + 16 * e, 16)
                k(f"v_mfma_f32_32x32x16_bf16 {d}, {a(4 * ks, 4)}, {v(fr[i] + 4 + 4 * e, 4)}, {'0' if ks == 0 else d}")
                if items:
                    k.put(items.pop(0))
        k.put(flat(items))
        if STAMPS.get("r") and j in (3,):
            stamp(k, f"m{j}")
        k.put(flat(chunk.get(j, [])))
        if STAMPS.get("r") and j in (3,):
            stamp(k, f"k{j}")


def q_first_tail(k, q, g):
    early, cs = q_colsum(k, q, g)
    k.put(early + flat(cs))
    k.order(q.st_tok[0])
    for part in range(2):
        q_pre(k, q, g, part)
        q_emit(k, q, g, part, True)
    k("s_waitcnt lgkmcnt(0)\n s_barrier")


def q_attn(k, q, R, layer, chunk, sc="", redo=None):
    T = R.fork()
    kf = T.get(12, 4)
    qf = T.get(8, 4)
    v0_ = T.get(6)
    v1_ = T.get(6)
    S = T.get(16, 4)
    P = T.get(8, 4)
    O0 = T.get(8, 4)
    O1 = T.get(8, 4)
    bA = T.get(4, 4)
    m = T.get(2)
    l = T.get(4)
    t = sT
    c = 20 ** -0.5 * LOG2E
    if redo:
        k(f"v_mov_b32 {v(l)}, {CS0 + 512}\n ds_read_b128 {v(P, 4)}, {v(l)}")
    for u in range(2):
        k(f"v_mov_b32 {v(qf + 4 * u + 2)}, 0\n v_mov_b32 {v(qf + 4 * u + 3)}, 0")
    k("s_mov_b64 exec, 0xffff")
    for u in range(2):
        k(f"ds_read_b64 {v(qf + 4 * u + 2, 2)}, {v(q.a2)} offset:{320 + 320 * u}")
    k("s_mov_b64 exec, -1")
    for u in range(2):
        k(f"ds_read_b64 {v(qf + 4 * u, 2)}, {v(q.a1)} offset:{320 + 320 * u}")
    for j in (1, 0, 2):
        k(f"ds_read_b64 {v(kf + 4 * j, 2)}, {v(q.a1)} offset:{6400 + 320 * j}")
        k(f"ds_read_b64 {v(kf + 4 * j + 2, 2)}, {v(q.a2)} offset:{6400 + 320 * j}")
    for j in range(3):
        k(f"ds_read_b64_tr_b16 {v(v1_ + 2 * j, 2)}, {v(q.av1)} offset:{320 * j}")
        k(f"ds_read_b64_tr_b16 {v(v0_ + 2 * j, 2)}, {v(q.av0)} offset:{320 * j}")
    bpA = q.bp
    if chunk == 0:
        bpA = bA
        k(f"v_mov_b32 {v(m)}, {NEG}")
        for i in range(4):
            k(f"v_cndmask_b32 {v(bA + i)}, {v(q.bp + i)}, {v(m)}, {s(sM0, 2)}")
    k(f"""
    s_mov_b32 {s(sC)}, {f2i(c)}
    s_lshl_b32 {s(t)}, {s(sJ0)}, 4
    s_add_u32 {s(t)}, {s(t)}, {OBL[layer]}
    s_lshl_b32 {s(t + 1)}, {s(sJ0)}, 3
    s_add_u32 {s(t + 1)}, {s(t + 1)}, {OBL[layer]}
    """)
    if redo:
        k(f"v_or3_b32 {v(P)}, {v(P)}, {v(P + 1)}, {v(P + 2)}\n v_or_b32 {v(P)}, {v(P)}, {v(P + 3)}\n v_cmp_ne_u32 vcc, 0, {v(P)}")
        redo()
    k(f"""
    v_mfma_f32_16x16x32_bf16 {v(S + 4, 4)}, {v(kf + 4, 4)}, {v(qf, 4)}, {v(q.bc, 4)}
    v_mfma_f32_16x16x32_bf16 {v(S + 8, 4)}, {v(kf + 4, 4)}, {v(qf + 4, 4)}, {v(q.bp, 4)}
    v_mfma_f32_16x16x32_bf16 {v(S, 4)}, {v(kf, 4)}, {v(qf, 4)}, {v(bpA, 4)}
    v_mfma_f32_16x16x32_bf16 {v(S + 12, 4)}, {v(kf + 8, 4)}, {v(qf + 4, 4)}, {v(q.bc, 4)}
    """)
    for u in range(2):
        for i in range(4):
            k(f"v_max_f32 {v(S + 8 * u + i)}, {v(S + 8 * u + i)}, {v(S + 8 * u + 4 + i)}")
        k(f"v_max3_f32 {v(m + u)}, {v(S + 8 * u)}, {v(S + 8 * u + 1)}, {v(S + 8 * u + 2)}")
        k(f"v_max_f32 {v(m + u)}, {v(m + u)}, {v(S + 8 * u + 3)}")
    k(f"""
    v_permlane16_swap_b32 {v(m)}, {v(m + 1)}
    v_max_f32 {v(m)}, {v(m)}, {v(m + 1)}
    v_mov_b32 {v(m + 1)}, {v(m)}
    v_permlane32_swap_b32 {v(m)}, {v(m + 1)}
    v_max_f32 {v(m)}, {v(m)}, {v(m + 1)}
    v_mul_f32 {v(m)}, {s(sC)}, {v(m)}
    v_mov_b32 {v(m + 1)}, {v(m)}
    v_permlane16_swap_b32 {v(m)}, {v(m + 1)}
    """)
    for u in range(2):
        for i in range(4):
            k(f"v_fma_f32 {v(S + 8 * u + i)}, {v(S + 8 * u + i)}, {s(sC)}, -{v(m + u)}")
        for i in range(4):
            k(f"v_exp_f32 {v(S + 8 * u + i)}, {v(S + 8 * u + i)}")
        for i in range(2):
            k(f"v_cvt_pk_bf16_f32 {v(S + 8 * u + 4 + i)}, {v(S + 8 * u + 2 * i)}, {v(S + 8 * u + 2 * i + 1)}")
        for i in range(2):
            k(f"v_bfi_b32 {v(P + 4 * u + i)}, {v(q.mc + i)}, 0, {v(S + 8 * u + 4 + i)}")
            k(f"v_and_b32 {v(P + 4 * u + 2 + i)}, {v(q.mc + i)}, {v(S + 8 * u + 4 + i)}")
        k(f"v_mfma_f32_16x16x32_bf16 {v(O1 + 4 * u, 4)}, {v(v1_ + 2 * u, 4)}, {v(P + 4 * u, 4)}, 0")
        k(f"v_mfma_f32_16x16x32_bf16 {v(O0 + 4 * u, 4)}, {v(v0_ + 2 * u, 4)}, {v(P + 4 * u, 4)}, 0")
    for u in range(2):
        k(f"v_mov_b32 {v(l + 2 * u)}, {v(O1 + 4 * u)}")
        k(f"v_permlane16_swap_b32 {v(O1 + 4 * u)}, {v(l + 2 * u)}")
        k(f"v_rcp_f32 {v(l + 2 * u)}, {v(l + 2 * u)}")
        for O in (O0, O1):
            for j in (0, 2):
                k(f"v_pk_mul_f32 {v(O + 4 * u + j, 2)}, {v(O + 4 * u + j, 2)}, {v(l + 2 * u, 2)} op_sel_hi:[1,0]")
        for i in range(2):
            k(f"v_cvt_pk_bf16_f32 {v(S + 2 * u + i)}, {v(O0 + 4 * u + 2 * i)}, {v(O0 + 4 * u + 2 * i + 1)}")
            k(f"v_cvt_pk_bf16_f32 {v(S + 4 + 2 * u + i)}, {v(O1 + 4 * u + 2 * i)}, {v(O1 + 4 * u + 2 * i + 1)}")
    k(f"""
    v_permlane16_swap_b32 {v(S)}, {v(S + 2)}
    v_permlane16_swap_b32 {v(S + 1)}, {v(S + 3)}
    v_permlane16_swap_b32 {v(S + 4)}, {v(S + 6)}
    v_permlane16_swap_b32 {v(S + 5)}, {v(S + 7)}
    buffer_store_dwordx4 {v(S, 4)}, {v(q.om)}, {srd(SWS)}, {s(t)} offen {sc}
    s_mov_b64 exec, {s(sLO32, 2)}
    """)
    tok = k(f"buffer_store_dwordx2 {v(S + 4, 2)}, {v(q.orr)}, {srd(SWS)}, {s(t + 1)} offen {sc}")
    k("s_mov_b64 exec, -1")
    return tok


RB0 = 0


def o_setup(k, R):
    o = QState()
    o.wl = R.get(4, 4)
    o.lm, o.lr, o.rb, o.xo, o.x0, o.sa = (R.get() for _ in range(6))
    T = R.fork()
    n, g, x1 = T.get(), T.get(), T.get()
    t = sT
    k(f"""
    v_and_b32 {v(n)}, 15, v1
    v_lshrrev_b32 {v(g)}, 4, v1
    s_and_b32 {s(t)}, {s(sOG)}, 3
    s_lshr_b32 {s(t + 1)}, {s(sOG)}, 2
    s_lshl_b32 {s(t + 2)}, {s(sWAVE)}, 6
    s_add_u32 {s(t + 2)}, {s(t + 2)}, {s(t)}
    s_lshl_b32 {s(t + 2)}, {s(t + 2)}, 13
    s_lshl_b32 {s(t + 3)}, {s(t + 1)}, 9
    s_add_u32 {s(t + 2)}, {s(t + 2)}, {s(t + 3)}
    v_lshl_add_u32 {v(x1)}, {v(g)}, 17, {s(t + 2)}
    v_lshl_add_u32 {v(o.lm)}, {v(n)}, 4, {v(x1)}
    s_lshl_b32 {s(t + 2)}, {s(sWAVE)}, 5
    s_add_u32 {s(t + 2)}, {s(t + 2)}, {s(t)}
    s_lshl_b32 {s(t + 2)}, {s(t + 2)}, 12
    s_lshl_b32 {s(t + 3)}, {s(t + 1)}, 8
    s_add_u32 {s(t + 2)}, {s(t + 2)}, {s(t + 3)}
    s_add_u32 {s(t + 2)}, {s(t + 2)}, {OB_R}
    v_lshl_add_u32 {v(x1)}, {v(g)}, 15, {s(t + 2)}
    v_lshl_add_u32 {v(o.lr)}, {v(n)}, 3, {v(x1)}
    v_lshlrev_b32 {v(o.rb)}, 4, v1
    s_lshl_b32 {s(t + 4)}, {s(t)}, 12
    s_add_u32 {s(t + 4)}, {s(t + 4)}, {s(t + 3)}
    v_lshl_add_u32 {v(x1)}, {v(n)}, 4, {s(t + 4)}
    v_lshl_add_u32 {v(o.sa)}, {v(g)}, 2, {v(x1)}
    s_mul_i32 {s(t + 5)}, {s(sCB)}, 20
    s_lshl_b32 {s(t + 6)}, {s(sWAVE)}, 2
    s_add_u32 {s(t + 5)}, {s(t + 5)}, {s(t + 6)}
    s_lshl_b32 {s(t + 6)}, {s(t + 5)}, 14
    v_lshl_add_u32 {v(x1)}, {v(g)}, 14, {v(x1)}
    v_add_u32 {v(o.xo)}, {s(t + 6)}, {v(x1)}
    s_lshl_b32 {s(t + 6)}, {s(t + 1)}, 7
    s_add_u32 {s(t + 6)}, {s(t + 6)}, {s(t)}
    s_mul_i32 {s(t + 6)}, {s(t + 6)}, 1280
    s_lshl_b32 {s(t + 5)}, {s(t + 5)}, 3
    s_add_u32 {s(t + 6)}, {s(t + 6)}, {s(t + 5)}
    v_mul_u32_u24 {v(x1)}, 10240, {v(n)}
    v_lshl_add_u32 {v(x1)}, {v(g)}, 3, {v(x1)}
    v_add_u32 {v(o.x0)}, {s(t + 6)}, {v(x1)}
    """)
    return o


def wo_reg(o, idx):
    return a(160 + 4 * idx, 4) if idx < 24 else v(o.wl, 4)


def wo_load(k, o, sc=""):
    t = 97
    k(f"""
    s_lshl_b32 {s(t)}, {s(sCB)}, 2
    s_add_u32 {s(t)}, {s(t)}, {s(sWAVE)}
    s_mul_i32 {s(t)}, {s(t)}, {25 * 1024}
    s_add_u32 {s(t)}, {s(t)}, {WOF}
    """)
    for i in range(25):
        k(f"buffer_load_dwordx4 {wo_reg(o, i)}, {v(o.rb)}, {srd(SWS)}, {s(t)} offen offset:{1024 * (i % 4)} {sc}")
        if i % 4 == 3:
            k(f"s_add_u32 {s(t)}, {s(t)}, 4096")


def o_resid_load(k, o, rs, layer, chunk, sc=""):
    t = 96
    if layer == 0:
        k(f"""
        s_mov_b32 {s(t)}, {chunk * 1024 * 1280}
        s_mov_b32 {s(t + 1)}, {chunk * 1024 * 1280 + 5120}
        buffer_load_dwordx2 {v(rs, 2)}, {v(o.x0)}, {srd(SX)}, {s(t)} offen
        buffer_load_dwordx2 {v(rs + 2, 2)}, {v(o.x0)}, {srd(SX)}, {s(t + 1)} offen
        v_lshrrev_b32 {v(rs + 4)}, 5, v1
        v_mul_u32_u24 {v(rs + 4)}, {5120 - 16}, {v(rs + 4)}
        v_bfe_u32 {v(rs + 5)}, v1, 4, 1
        v_lshlrev_b32 {v(rs + 5)}, 2, {v(rs + 5)}
        v_sub_u32 {v(rs + 4)}, {v(rs + 4)}, {v(rs + 5)}
        v_add_u32 {v(rs + 4)}, {v(rs + 4)}, {v(o.x0)}
        s_mul_i32 {s(t + 1)}, {s(sWAVE)}, 24
        s_sub_u32 {s(t + 1)}, {chunk * 1024 * 1280 + 128}, {s(t + 1)}
        buffer_load_dword {v(rs + 4)}, {v(rs + 4)}, {srd(SX)}, {s(t + 1)} offen
        """)
    else:
        k(f"s_mov_b32 {s(t)}, {X2 + chunk * 2048}")
        k(f"buffer_load_dwordx4 {v(rs, 4)}, {v(o.xo)}, {srd(SWS)}, {s(t)} offen {sc}")
        k(f"s_add_u32 {s(t + 1)}, {s(sOM)}, {X2 + chunk * 2048}")
        k(f"buffer_load_dword {v(rs + 4)}, {v(o.sa)}, {srd(SWS)}, {s(t + 1)} offen {sc}")


def o_load(k, o, of, layer, chunk, sc=""):
    t = 96
    base = OBL[layer]
    for u in range(4):
        k(f"s_mov_b32 {s(t)}, {base + chunk * 4096 + u * 32768}")
        for r in range(2):
            k(f"buffer_load_dwordx4 {v(of + 8 * u + 4 * r, 4)}, {v(o.lm)}, {srd(SWS)}, {s(t)} offen offset:{256 * r} {sc}")
    for hd in range(2):
        k(f"s_mov_b32 {s(t)}, {base + chunk * 2048 + hd * 16384}")
        for r in range(2):
            tok = k(f"buffer_load_dwordx2 {v(of + 32 + 4 * r + 2 * hd, 2)}, {v(o.lr)}, {srd(SWS)}, {s(t)} offen offset:{128 * r} {sc}")
    return tok


SX0 = RB0 + 32768
sOA, sOM = 35, 36


def o_addr(k, o, regs, tmp):
    o.wa = [None] + list(regs[:4])
    o.ra, o.rm, o.sw, o.sr, o.so, o.one = regs[4:10]
    wa, ra, rm, sw, sr, so, one, rb = o.wa, o.ra, o.rm, o.sw, o.sr, o.so, o.one, tmp
    t = sT + 7
    k(f"v_add_u32 {v(rb)}, {XT0}, {v(o.rb)}\n s_lshl_b32 {s(t)}, {s(sWAVE)}, 11\n v_add_u32 {v(wa[4])}, {s(t)}, {v(rb)}")
    for c in range(1, 4):
        k(f"""
        s_add_u32 {s(t)}, {s(sWAVE)}, {c}
        s_and_b32 {s(t)}, {s(t)}, 3
        s_mul_i32 {s(t)}, {s(t)}, 6144
        v_add_u32 {v(wa[c])}, {s(t)}, {v(rb)}
        """)
    k(f"""
    s_mul_i32 {s(t)}, {s(sWAVE)}, 6144
    v_add_u32 {v(ra)}, {s(t)}, {v(rb)}
    s_lshl_b32 {s(t)}, {s(sWAVE)}, 8
    s_add_u32 {s(t)}, {s(t)}, {XT0}
    v_and_b32 {v(so)}, 15, v1
    v_lshl_add_u32 {v(sw)}, {v(so)}, 4, {s(t)}
    v_lshrrev_b32 {v(one)}, 5, v1
    v_lshl_add_u32 {v(rm)}, {v(one)}, 10, {v(sw)}
    v_bfe_u32 {v(one)}, v1, 4, 1
    v_lshl_add_u32 {v(rm)}, {v(one)}, 3, {v(rm)}
    v_lshlrev_b32 {v(so)}, 2, {v(so)}
    v_lshl_add_u32 {v(so)}, {v(one)}, 10, {v(so)}
    s_lshl_b32 {s(t)}, {s(sWAVE)}, 6
    v_lshl_add_u32 {v(sr)}, {v(one)}, 3, {s(t)}
    v_and_b32 {v(one)}, 12, v1
    v_lshl_add_u32 {v(sr)}, {v(one)}, 2, {v(sr)}
    v_and_b32 {v(one)}, 2, v1
    v_lshl_add_u32 {v(sr)}, {v(one)}, 1, {v(sr)}
    v_add_u32 {v(sr)}, {XT0 + SX0}, {v(sr)}
    v_lshrrev_b32 {v(one)}, 4, v1
    v_lshl_add_u32 {v(sw)}, {v(one)}, 2, {v(sw)}
    v_mov_b32 {v(one)}, 0x3f803f80
    """)


def o_scalars(k):
    t = sT
    k(f"""
    s_lshl_b32 {s(t)}, {s(sWAVE)}, 6
    s_and_b32 {s(sOA)}, {s(sOG)}, 3
    s_lshl_b32 {s(sOA)}, {s(sOA)}, 13
    s_add_u32 {s(sOA)}, {s(sOA)}, {s(t)}
    s_lshr_b32 {s(t)}, {s(sOG)}, 4
    s_lshl_b32 {s(t)}, {s(t)}, 11
    s_add_u32 {s(sOA)}, {s(sOA)}, {s(t)}
    s_and_b32 {s(t)}, {s(sOG)}, 12
    s_lshl_b32 {s(t)}, {s(t)}, 6
    s_add_u32 {s(sOA)}, {s(sOA)}, {s(t)}
    s_mul_i32 {s(sOM)}, {s(sCB)}, 20
    s_add_u32 {s(sOM)}, {s(sOM)}, {s(sWAVE)}
    s_add_u32 {s(sOM)}, {s(sOM)}, 16
    s_lshl_b32 {s(sOM)}, {s(sOM)}, 14
    """)


def o_compute(k, o, R, of, rs, layer, chunk, sc="", mid=(), tail=(), extra=()):
    T = R.fork()
    acc = T.get(40, 4)
    pr, pm = acc + 8, acc + 32
    xf = T.get(10)
    pq = T.get()
    pk = T.get(4, 4)
    st = T.get(6)
    assert T.n <= 144
    wa, ra, rm, sw, sr, so, one = o.wa, o.ra, o.rm, o.sw, o.sr, o.so, o.one
    t = sT
    m = k.mark()
    for i in range(6):
        k(f"v_mov_b32 {v(st + i)}, 0")
    base = X1L[layer] + chunk * 2048
    k(f"""
    s_mov_b32 {s(t)}, {base}
    s_add_u32 {s(t + 1)}, {s(sOM)}, {base}
    s_add_u32 {s(t + 2)}, {s(sOA)}, {SA + layer * SA_SZ + chunk * 4096}
    s_mov_b32 {s(t + 3)}, 0x99999999
    s_mov_b32 {s(t + 4)}, 0x99999999
    """)
    f1 = k.cut(m)
    for i in range(5):
        k(f"v_lshlrev_b32 {v(xf + 2 * i)}, 16, {v(rs + i)}\n v_and_b32 {v(xf + 2 * i + 1)}, 0xffff0000, {v(rs + i)}")
    f2 = k.cut(m)
    entry = k.lab("oe")
    if STAMPS.get("o"):
        k("s_waitcnt vmcnt(0)")
        stamp(k, "old")
    k(f"{entry}:")
    mid = vm_items(mid)
    pend = []
    for c in (4, 1, 2, 3, 0):
        n = 0
        for u in range(5):
            for r in range(2):
                d = v(acc + 8 * c + 4 * r, 4)
                cin = d if u else (v(xf + 4 * r, 4) if c == 0 else "0")
                k(f"v_mfma_f32_16x16x32_bf16 {d}, {wo_reg(o, 5 * u + c)}, {v(of + 8 * u + 4 * r, 4)}, {cin}")
                n += 1
                if c == 1 and n == 6:
                    k(f"v_cmp_u_f32 vcc, {v(acc + 32)}, {v(acc + 36)}")
                    if layer == 1:
                        k(f"s_or_b64 vcc, vcc, {s(sC, 2)}")
                    retry(k, entry, lambda: (o_load(k, o, of, layer, chunk, sc), o_resid_load(k, o, rs, layer, chunk, sc)),
                          "o", count=2 * layer + chunk)
                elif c == 1 and layer == 1 and n == 3:
                    k(f"v_max3_u32 {v(pk)}, {v(rs)}, {v(rs + 1)}, {v(rs + 2)}\n v_max3_u32 {v(pk)}, {v(pk)}, {v(rs + 3)}, {v(rs + 4)}")
                elif c == 1 and layer == 1 and n == 4:
                    k(f"v_cmp_eq_u32 {s(sC, 2)}, -1, {v(pk)}")
                elif pend and n in ((5, 6) if c == 0 else (7, 9)):
                    k(pend.pop(0))
                elif c in (2, 3) and n in (1, 3, 5) and mid:
                    k.put(mid.pop(0))
                elif c == 4:
                    k.put(f1[:2])
                    del f1[:2]
                elif c in (2, 3):
                    k.put(f2[:2])
                    del f2[:2]
        if c:
            off = RB0 + (24576 if c == 4 else 2048 * (c - 1))
            pend = [f"ds_write_b128 {v(wa[c])}, {v(acc + 8 * c + 4 * r, 4)} offset:{off + 1024 * r}" for r in range(2)]
    assert not mid and not f1 and not f2
    k("s_waitcnt lgkmcnt(0)\n s_barrier")
    for c2 in range(3):
        for r2 in range(2):
            k(f"ds_read_b128 {v(pr + 8 * c2 + 4 * r2, 4)}, {v(ra)} offset:{RB0 + 2048 * c2 + 1024 * r2}")
    for w in range(4):
        k(f"ds_read_b64 {v(pm + 2 * w, 2)}, {v(rm)} offset:{RB0 + 24576 + 2048 * w}")
    if STAMPS.get("o"):
        stamp(k, "omf")
    tail = vm_items(tail)
    n0, n1 = OTAIL
    k.put(flat(tail[:n0]))
    for c2 in range(3):
        for i in range(0, 8, 2):
            k(f"v_pk_add_f32 {v(acc + i, 2)}, {v(acc + i, 2)}, {v(pr + 8 * c2 + i, 2)}")
    for i in range(0, 8, 2):
        k(f"v_cvt_pk_bf16_f32 {v(pk + i // 2)}, {v(acc + i)}, {v(acc + i + 1)}")
    for w in range(4):
        k(f"v_pk_add_f32 {v(xf + 8, 2)}, {v(xf + 8, 2)}, {v(pm + 2 * w, 2)}")
    k(f"v_cvt_pk_bf16_f32 {v(pq)}, {v(xf + 8)}, {v(xf + 9)}")
    k(f"buffer_store_dwordx4 {v(pk, 4)}, {v(o.xo)}, {srd(SWS)}, {s(t)} offen {sc}")
    k(f"buffer_store_dword {v(pq)}, {v(o.sa)}, {srd(SWS)}, {s(t + 1)} offen {sc}")
    for i in range(4):
        k(f"v_dot2c_f32_bf16 {v(st + (i & 2))}, {v(pk + i)}, {v(one)}")
        k(f"v_dot2c_f32_bf16 {v(st + (i & 2) + 1)}, {v(pk + i)}, {v(pk + i)}")
    k(f"""
    v_dot2c_f32_bf16 {v(st + 4)}, {v(pq)}, {v(one)}
    v_dot2c_f32_bf16 {v(st + 5)}, {v(pq)}, {v(pq)}
    v_permlane32_swap_b32 {v(st)}, {v(st + 2)}
    v_permlane32_swap_b32 {v(st + 1)}, {v(st + 3)}
    v_pk_add_f32 {v(st, 2)}, {v(st, 2)}, {v(st + 2, 2)}
    v_pk_add_f32 {v(st, 2)}, {v(st, 2)}, {v(st + 4, 2)}
    v_permlane16_swap_b32 {v(st)}, {v(st + 1)}
    v_add_f32 {v(st)}, {v(st)}, {v(st + 1)}
    ds_write_b32 {v(sw)}, {v(st)} offset:{SX0}
    """)
    k.put(flat(tail[n0:n1]))
    k(f"""
    s_waitcnt lgkmcnt(0)
    s_barrier
    ds_read2st64_b32 {v(st, 2)}, {v(sr)} offset0:0 offset1:1
    ds_read2st64_b32 {v(st + 2, 2)}, {v(sr)} offset0:2 offset1:3
    """)
    k.put(list(extra))
    k(f"""
    v_pk_add_f32 {v(st, 2)}, {v(st, 2)}, {v(st + 2, 2)}
    v_add_f32 {v(st)}, {v(st)}, {v(st + 1)}
    v_cndmask_b32 {v(st)}, {v(st)}, 1.0, {s(t + 3, 2)}
    s_mov_b64 exec, {s(sLO32, 2)}
    buffer_atomic_add_f32 {v(st)}, {v(so)}, {srd(SWS)}, {s(t + 2)} offen
    s_mov_b64 exec, -1
    """)
    if STAMPS.get("o"):
        stamp(k, "oat")
    k.put(flat(tail[n1:]))


OTAIL = [6, 99]


def s2_load(k, d, sidx, sc=""):
    o, la = d + 20, d + 21
    t = sT
    k(f"""
    s_and_b32 {s(t)}, {s(sidx)}, 3
    s_lshl_b32 {s(t)}, {s(t)}, 12
    s_lshr_b32 {s(t + 1)}, {s(sidx)}, 2
    s_lshl_b32 {s(t + 1)}, {s(t + 1)}, 7
    s_add_u32 {s(sidx)}, {s(t)}, {s(t + 1)}
    v_lshrrev_b32 {v(o)}, 3, v0
    v_and_b32 {v(la)}, 7, v0
    v_lshlrev_b32 {v(la)}, 4, {v(la)}
    v_lshl_add_u32 {v(o)}, {v(o)}, 14, {v(la)}
    s_sub_u32 {s(t)}, s2, 160
    s_cmp_lt_u32 {s(t)}, 64
    s_cselect_b32 {s(t)}, 0, {OOB}
    v_add_u32 {v(o)}, {s(t)}, {v(o)}
    """)
    s2_reload(k, d, sidx, sc)


def s2_reload(k, d, sidx, sc):
    o, t = d + 20, sT
    k(f"s_add_u32 {s(t + 1)}, {s(sidx)}, {X2}")
    for e in range(5):
        k(f"buffer_load_dwordx4 {v(d + 4 * e, 4)}, {v(o)}, {srd(SWS)}, {s(t + 1)} offen {sc}")
        if e < 4:
            k(f"s_add_u32 {s(t + 1)}, {s(t + 1)}, {32 * 16384}")


def s2_finish(k, d, sidx, lds0, sc=""):
    o, la, one, x1, st = d + 20, d + 21, d + 22, d + 23, d + 24
    t = sT
    k(f"""
    v_mov_b32 {v(one)}, 0x3f803f80
    s_lshl_b32 {s(t)}, {s(sWAVE)}, 7
    s_add_u32 {s(t)}, {s(t)}, {lds0}
    v_lshrrev_b32 {v(x1)}, 4, v1
    v_lshl_add_u32 {v(la)}, {v(x1)}, 2, {v(la)}
    v_add_u32 {v(la)}, {s(t)}, {v(la)}
    """)
    entry = k.lab("se")
    k(f"{entry}:")
    for i in range(4):
        k(f"v_mov_b32 {v(st + i)}, 0")
    for e in range(5):
        for i in range(4):
            k(f"v_dot2c_f32_bf16 {v(st + (i & 2))}, {v(d + 4 * e + i)}, {v(one)}")
            k(f"v_dot2c_f32_bf16 {v(st + (i & 2) + 1)}, {v(d + 4 * e + i)}, {v(d + 4 * e + i)}")
    k(f"v_cmp_u_f32 vcc, {v(st + 1)}, {v(st + 3)}")
    retry(k, entry, lambda: s2_reload(k, d, sidx, sc), "s2", count=8)
    k(f"""
    v_permlane32_swap_b32 {v(st)}, {v(st + 2)}
    v_permlane32_swap_b32 {v(st + 1)}, {v(st + 3)}
    v_pk_add_f32 {v(st, 2)}, {v(st, 2)}, {v(st + 2, 2)}
    v_permlane16_swap_b32 {v(st)}, {v(st + 1)}
    v_add_f32 {v(st)}, {v(st)}, {v(st + 1)}
    v_add_f32_dpp {v(st)}, {v(st)}, {v(st)} row_ror:8 row_mask:0xf bank_mask:0xf
    ds_write_b32 {v(la)}, {v(st)}
    v_and_b32 {v(o)}, 15, v0
    v_lshlrev_b32 {v(o)}, 3, {v(o)}
    v_add_u32 {v(la)}, {lds0}, {v(o)}
    v_mov_b32 {v(x1)}, {OOB}
    v_cmp_gt_u32 vcc, 16, v0
    v_cndmask_b32 {v(o)}, {v(x1)}, {v(o)}, vcc
    s_add_u32 {s(t)}, {s(sidx)}, {ST + ST_SZ}
    s_waitcnt lgkmcnt(0)
    s_barrier
    """)
    for w in range(4):
        k(f"ds_read_b64 {v(d + 2 * w, 2)}, {v(la)} offset:{128 * w}")
    k(f"""
    v_pk_add_f32 {v(d, 2)}, {v(d, 2)}, {v(d + 2, 2)}
    v_pk_add_f32 {v(d + 4, 2)}, {v(d + 4, 2)}, {v(d + 6, 2)}
    v_pk_add_f32 {v(d, 2)}, {v(d, 2)}, {v(d + 4, 2)}
    """)
    rstd_nm(k, d, d + 1, x1)
    return k(f"buffer_store_dwordx2 {v(d, 2)}, {v(o)}, {srd(SWS)}, {s(t)} offen {sc}")


U0 = AT0
U_PH, U_CH = 1216, 4864
Y0 = U0 + 4 * U_CH
Y_PH, Y_CH = 1056, 4224
assert Y0 + 4 * Y_CH == XT0
KL0 = XT0 + 5 * XG
KL_END = KL0 + 4 * K_PITCH


def c_setup(k, R):
    c = QState()
    c.go, c.uw, c.ur, c.kr, c.yw, c.yr, c.oo = (R.get() for _ in range(7))
    c.car = R.get(3)
    x1, x2 = c.car, c.car + 1
    t = sT
    k(f"""
    s_lshl_b32 {s(t)}, {s(sWAVE)}, 12
    v_lshl_add_u32 {v(c.go)}, v1, 4, {s(t)}
    s_mul_i32 {s(t)}, {s(sWAVE)}, {U_PH}
    s_add_u32 {s(t)}, {s(t)}, {U0 + 192}
    v_lshl_add_u32 {v(c.uw)}, v1, 2, {s(t)}
    s_mul_i32 {s(t)}, {s(sWAVE)}, {U_CH}
    s_add_u32 {s(t)}, {s(t)}, {U0 + 192 - 16 - 96}
    v_and_b32 {v(x1)}, 3, v1
    v_mul_u32_u24 {v(x1)}, {U_PH}, {v(x1)}
    v_bfe_u32 {v(x2)}, v1, 2, 3
    v_lshl_add_u32 {v(x1)}, {v(x2)}, 4, {v(x1)}
    v_lshrrev_b32 {v(x2)}, 5, v1
    v_lshl_add_u32 {v(x1)}, {v(x2)}, 4, {v(x1)}
    v_add_u32 {v(c.ur)}, {s(t)}, {v(x1)}
    s_mul_i32 {s(t)}, {s(sWAVE)}, {K_PITCH}
    s_add_u32 {s(t)}, {s(t)}, {KL0 + 128 - 32}
    v_lshlrev_b32 {v(x2)}, 6, {v(x2)}
    v_sub_u32 {v(x2)}, {s(t)}, {v(x2)}
    v_bfe_u32 {v(x1)}, v1, 4, 1
    v_lshl_add_u32 {v(x2)}, {v(x1)}, 5, {v(x2)}
    v_and_b32 {v(x1)}, 3, v1
    v_lshl_add_u32 {v(x2)}, {v(x1)}, 3, {v(x2)}
    v_bfe_u32 {v(x1)}, v1, 2, 2
    v_lshlrev_b32 {v(x1)}, 3, {v(x1)}
    v_sub_u32 {v(c.kr)}, {v(x2)}, {v(x1)}
    s_mul_i32 {s(t)}, {s(sWAVE)}, {Y_CH}
    s_add_u32 {s(t)}, {s(t)}, {Y0}
    v_and_b32 {v(x1)}, 3, v1
    v_mul_u32_u24 {v(x1)}, {Y_PH}, {v(x1)}
    v_and_b32 {v(x2)}, 60, v1
    v_add3_u32 {v(c.yw)}, {v(x1)}, {v(x2)}, {s(t)}
    s_mul_i32 {s(t)}, {s(sWAVE)}, {Y_PH}
    s_add_u32 {s(t)}, {s(t)}, {Y0}
    v_lshl_add_u32 {v(c.yr)}, v1, 3, {s(t)}
    s_mul_i32 {s(t)}, {s(sWAVE)}, 1280
    s_lshl_b32 {s(t + 1)}, {s(sQUAD)}, 3
    s_add_u32 {s(t)}, {s(t)}, {s(t + 1)}
    v_mul_u32_u24 {v(x1)}, 10240, v1
    v_add_u32 {v(c.oo)}, {s(t)}, {v(x1)}
    """)
    return c


def c_zero(k, c, R):
    T = R.fork()
    x1, x2 = T.get(), T.get()
    z = T.get(2)
    k(f"""
    v_lshrrev_b32 {v(x1)}, 4, v0
    v_mul_u32_u24 {v(x1)}, {U_PH}, {v(x1)}
    v_and_b32 {v(x2)}, 15, v0
    v_lshl_add_u32 {v(x1)}, {v(x2)}, 3, {v(x1)}
    v_add_u32 {v(x1)}, {U0 + 64}, {v(x1)}
    v_mov_b32 {v(z)}, 0
    v_mov_b32 {v(z + 1)}, 0
    ds_write_b64 {v(x1)}, {v(z, 2)}
    v_mov_b32 {v(c.car)}, 0
    v_mov_b32 {v(c.car + 1)}, 0
    v_mov_b32 {v(c.car + 2)}, 0
    """)


def k_from_global(k, R):
    T = R.fork()
    o = T.get()
    t = sT
    k(f"""
    s_mul_i32 {s(t)}, {s(sWAVE)}, {K_PITCH}
    s_mul_i32 {s(t + 1)}, {s(sQUAD)}, {4 * K_PITCH}
    s_add_u32 {s(t + 1)}, {s(t + 1)}, {s(t)}
    s_add_u32 {s(t + 1)}, {s(t + 1)}, {KB}
    s_add_u32 m0, {s(t)}, {KL0}
    v_lshlrev_b32 {v(o)}, 4, v1
    """)
    for e in range(4):
        k(f"buffer_load_dwordx4 {v(o)}, {srd(SWS)}, {s(t + 1)} offen offset:{1024 * e} lds")
    k(f"""
    s_add_u32 m0, {s(t)}, {KL0 + 4096}
    s_add_u32 {s(t + 1)}, {s(t + 1)}, 4096
    s_mov_b64 exec, 15
    """)
    tok = k(f"buffer_load_dwordx4 {v(o)}, {srd(SWS)}, {s(t + 1)} offen lds")
    k("s_mov_b64 exec, -1")
    return tok


def c_load(k, c, dx, ds_, layer, chunk, sc=""):
    t = 96
    k(f"""
    s_lshl_b32 {s(t)}, {s(sQUAD)}, 14
    s_add_u32 {s(t)}, {s(t)}, {X1L[layer]}
    s_lshl_b32 {s(t + 1)}, {s(sWAVE)}, 12
    s_add_u32 {s(t + 1)}, {s(t + 1)}, {SA + layer * SA_SZ + 4096 * chunk}
    """)
    for e in range(2):
        k(f"buffer_load_dwordx4 {v(dx[e], 4)}, {v(c.go)}, {srd(SWS)}, {s(t)} offen offset:{2048 * chunk + 1024 * e} {sc}")
    for i in range(4):
        c.ld_tok = k(f"buffer_load_dwordx4 {v(ds_ + 4 * i, 4)}, {v(c.go)}, {srd(SWS)}, {s(t + 1)} offen offset:{1024 * i} {sc}")


def c_check(k, c, tmp, dx, ds_, layer, chunk, sc=""):
    entry = k.lab("ce")
    k.wait(c.ld_tok)
    k(f"""
    {entry}:
    v_max3_u32 {v(tmp)}, {v(dx[0])}, {v(dx[0] + 1)}, {v(dx[0] + 2)}
    v_max3_u32 {v(tmp)}, {v(tmp)}, {v(dx[0] + 3)}, {v(dx[1])}
    v_max3_u32 {v(tmp)}, {v(tmp)}, {v(dx[1] + 1)}, {v(dx[1] + 2)}
    v_max_u32 {v(tmp)}, {v(tmp)}, {v(dx[1] + 3)}
    v_cmp_eq_u32 {s(sC, 2)}, -1, {v(tmp)}
    v_min3_f32 {v(tmp + 1)}, {v(ds_)}, {v(ds_ + 3)}, {v(ds_ + 4)}
    v_min3_f32 {v(tmp + 1)}, {v(tmp + 1)}, {v(ds_ + 7)}, {v(ds_ + 8)}
    v_min3_f32 {v(tmp + 1)}, {v(tmp + 1)}, {v(ds_ + 11)}, {v(ds_ + 12)}
    v_min_f32 {v(tmp + 1)}, {v(tmp + 1)}, {v(ds_ + 15)}
    v_cmp_neq_f32 vcc, {f2i(8.0)}, {v(tmp + 1)}
    s_or_b64 vcc, vcc, {s(sC, 2)}
    """)
    retry(k, entry, lambda: c_load(k, c, dx, ds_, layer, chunk, sc), "c", count=4 + 2 * layer + chunk)


def c_norm(k, c, tmp, xf, dx, ds_, chunk):
    for e in range(2):
        x, sa, sb, f = dx[e], ds_ + 8 * e + 1, ds_ + 8 * e + 5, xf + 8 * e
        a_, _ = grab(k, lambda: rstd_nm(k, sa, sa + 1, tmp))
        b_, _ = grab(k, lambda: rstd_nm(k, sb, sb + 1, tmp + 1))
        for p_, q_ in zip(a_, b_):
            k.put([p_, q_])
        for tk in range(2):
            for j in range(2):
                k(f"v_lshlrev_b32 {v(f + 4 * j + tk)}, 16, {v(x + 2 * tk + j)}")
                k(f"v_and_b32 {v(f + 4 * j + 2 + tk)}, 0xffff0000, {v(x + 2 * tk + j)}")
        for ch in range(4):
            k(f"""
            v_fma_f32 {v(tmp)}, {v(f + 2 * ch)}, {v(sa)}, {v(sa + 1)}
            v_fma_f32 {v(tmp + 1)}, {v(f + 2 * ch + 1)}, {v(sb)}, {v(sb + 1)}
            v_cvt_pk_bf16_f32 {v(x + ch)}, {v(tmp)}, {v(tmp + 1)}
            """)
        for ch in range(4):
            k(f"ds_write_b32 {v(c.uw)}, {v(x + ch)} offset:{U_CH * ch + 512 * chunk + 256 * e}")


def k_frag(k, c, b, idx):
    k(f"ds_read_b64_tr_b16 {v(b, 2)}, {v(c.kr)} offset:{128 * idx + 32}")
    k(f"ds_read_b64_tr_b16 {v(b + 2, 2)}, {v(c.kr)} offset:{128 * idx}")


def c_mfma(k, c, ops, accs, pool, first, dist=4, held={}, held_until=1 << 30):
    m0 = k.mark()
    keys = [(("u", tau, c0), ("h" if (p < held_until and 4 * i + c0 in held) else "k", 4 * i + c0))
            for p, (_, tau, i, c0) in enumerate(ops)]
    where = {}
    free = list(pool)

    def next_use(key, p):
        for j in range(p, len(ops)):
            if key in keys[j]:
                return j
        return 1 << 30

    def ensure(key, p):
        if key in where or key[0] == "h":
            return
        if not free:
            victim = max(where, key=lambda x: next_use(x, p))
            assert next_use(victim, p) > p + dist, "fragment pool too small"
            free.append(where.pop(victim))
        b = free.pop(0)
        where[key] = b
        if key[0] == "u":
            k(f"ds_read_b128 {v(b, 4)}, {v(c.ur)} offset:{128 * key[1] + 32 * (3 - key[2])}")
        else:
            k_frag(k, c, b, key[1])
    for j in range(min(dist, len(ops))):
        for key in keys[j]:
            ensure(key, 0)
    started = set()
    for p, (tile, tau, i, c0) in enumerate(ops):
        d = v(accs[tile], 16)
        cin = "0" if (tile in first and tile not in started) else d
        started.add(tile)
        kb = held[keys[p][1][1]] if keys[p][1][0] == "h" else where[keys[p][1]]
        k(f"v_mfma_f32_32x32x16_bf16 {d}, {v(where[keys[p][0]], 4)}, {v(kb, 4)}, {cin}")
        if p + dist < len(ops):
            for key in keys[p + dist]:
                ensure(key, p + 1)
    return k.cut(m0)


def tri_ops(t0):
    return [(t, t - i, i, c0) for t in range(t0, t0 + 4) for i in range(t - t0 + 1) for c0 in range(4)]


def cross_ops():
    return [(tau + i, tau, i, c0) for c0 in range(4) for i in range(1, 8) for tau in range(4) if 4 <= tau + i <= 7]


def c_horner(k, c, acc, tl, tmp):
    m0 = k.mark()
    for ph in (3, 2, 1):
        for g in range(4):
            prev = c.car + (ph - 1) if g == 0 else acc + 4 * (g - 1) + ph
            k(f"v_cndmask_b32 {v(tmp + g)}, {v(acc + 4 * g + ph)}, {v(prev)}, {s(sM63, 2)}")
        k(f"v_mov_b32 {v(c.car + ph - 1)}, {v(acc + 12 + ph)}")
        for g in range(4):
            r = acc + 4 * g + ph - 1
            k(f"v_add_f32_dpp {v(r)}, {v(tmp + g)}, {v(r)} wave_ror:1 row_mask:0xf bank_mask:0xf")
    for g in range(4):
        k(f"ds_write_b32 {v(c.yw)}, {v(acc + 4 * g)} offset:{64 * (4 * tl + g)}")
    return k.cut(m0)


def mfma_lack(out, nxt):
    c = next((i for i in nxt if i.kind not in ("label", "pseudo")), None)
    d, lack = 0, 0
    for p in reversed(out[-14:]):
        if c is not None and p.kind == "mfma":
            lack = max(lack, Kernel.need(p, c) - d)
        d += p.states()
    return lack


def cyc(lst, prev):
    t = 0
    for i in lst:
        if i.kind == "label":
            continue
        if i.kind == "pseudo":
            t += 4 if i.tok and i.mods == "" else 0
        elif i.kind == "valu":
            t += 8 if i.mn.startswith(TRANS + ("v_permlane",)) else 4
        elif i.kind in ("ds", "vmem", "dma"):
            t += (8 if prev == "valu" else 0) + {"ds_write_b32": 8, "ds_write_b64": 12, "ds_write_b128": 25}.get(i.mn, 4)
        elif i.mn == "s_nop":
            t += 4 * i.states()
        elif i.mn == "s_barrier":
            t += 12
        else:
            t += 4
        if i.kind in ("valu", "ds", "vmem", "dma"):
            prev = i.kind
    return t, prev


ROOM = [8]


def weave(main, after, flush=(), vm_gap=2, vm={}):
    out, q, n = [], [], 0
    idx, hold, last_vm = 0, 0, -99
    pend, qv = [], []

    def emit(lst):
        for i in lst:
            hit = [p for p, d in enumerate(pend) if d & i.uses]
            if hit:
                del pend[:hit[-1] + 1]
            if i.kind == "ds":
                pend.append(set(i.defs))
            out.append(i)
    while idx < len(main):
        i = main[idx]
        if i.kind == "mfma" and n + 1 in flush:
            emit(flat([e for e in q if not isinstance(e, int)]))
            q = []
        emit([i])
        idx += 1
        if i.kind != "mfma":
            continue
        n += 1
        if n in after:
            q += after[n]
        must = []
        while idx < len(main) and main[idx].kind != "mfma":
            must.append(main[idx])
            idx += 1
        qv += vm.get(n, [])
        if qv and n - last_vm >= vm_gap and len(must) <= 2:
            must += flat([qv.pop(0)])
            last_vm = n
        emit(must)
        used, prev = cyc(must, "mfma")
        room = 4 * i.passes - ROOM[0] - used
        if idx < len(main) and any(d & main[idx].uses for d in pend):
            room -= 4
        full = room
        hold = max(hold - 1, 0)
        while q and not hold:
            if isinstance(q[0], int):
                hold = q.pop(0)
                continue
            e = flat([q[0]])
            lack = mfma_lack(out, e)
            if lack > 0:
                st = min(lack, room // 4)
                if st > 0:
                    emit([Ins(f"s_nop {st - 1}")])
                    room -= 4 * st
                if st < lack:
                    break
            isvm = any(x.kind in ("vmem", "dma") for x in e)
            c, p2 = cyc(e, prev)
            if any(d & e[0].uses for d in pend):
                c += 4
            if c > room and not (room == full and (c > 24 or full >= 16)):
                break
            q.pop(0)
            emit(e)
            room -= c
            prev = p2
            if isvm:
                last_vm = n
    return out, flat(qv) + flat([e for e in q if not isinstance(e, int)])


def c_out(k, c, R, xf, layer, chunk, sc="", halves=(0, 1)):
    T = R.fork()
    y = T.get(16, 4)
    pk = T.get(8, 4)
    t = sT
    toks = []
    for e in halves:
        for ch in range(4):
            rd = k(f"ds_read_b64 {v(y + 8 * e + 2 * ch, 2)}, {v(c.yr)} offset:{Y_CH * ch + 512 * e}")
    if layer == 0:
        k(f"s_lshl_b32 {s(t)}, {s(sQUAD)}, 14\n s_add_u32 {s(t)}, {s(t)}, {X2}")
    k.wait(rd)
    for e in halves:
        f, yy, p = xf + 8 * e, y + 8 * e, pk + 4 * e
        for i in range(8):
            k(f"v_add_f32 {v(yy + i)}, {v(yy + i)}, {v(f + i)}")
        for tk in range(2):
            for j in range(2):
                k(f"v_cvt_pk_bf16_f32 {v(p + 2 * tk + j)}, {v(yy + 4 * j + tk)}, {v(yy + 4 * j + 2 + tk)}")
        if layer == 0:
            toks.append(k(f"buffer_store_dwordx4 {v(p, 4)}, {v(c.go)}, {srd(SWS)}, {s(t)} offen offset:{2048 * chunk + 1024 * e} {sc}"))
        else:
            for tk in range(2):
                k(f"s_mov_b32 {s(t)}, {(256 * chunk + 128 * e + tk) * 5120}")
                toks.append(k(f"buffer_store_dwordx2 {v(p + 2 * tk, 2)}, {v(c.oo)}, {srd(SOUT)}, {s(t)} offen"))
    return toks


sAA, sWA = 86, 87
FL_DONE, FL_CNT, FL_HINT = FL, FL + 8192, FL + 9216
SPIN_MAX = 1 << 20


sM8 = 50


def sync_setup(k):
    t = sT
    k(f"""
    s_and_b32 {s(t)}, s2, 7
    s_lshl_b32 {s(sAA)}, {s(t)}, 7
    s_add_u32 {s(sAA)}, {s(sAA)}, {FL}
    s_lshl_b32 {s(sWA)}, {s(t)}, 10
    s_add_u32 {s(sWA)}, {s(sWA)}, {FL}
    s_add_u32 {s(sWA + 2)}, {s(sWA)}, 16384
    v_cmp_gt_u32 {s(sM8, 2)}, 8, v0
    v_cmp_eq_u32 vcc, 0, v0
    v_lshlrev_b32 {v(vL7)}, 7, v1
    v_mov_b32 {v(vL0)}, {OOB}
    v_cndmask_b32 {v(vL7)}, {v(vL0)}, {v(vL7)}, {s(sM8, 2)}
    v_cndmask_b32 {v(vL0)}, {v(vL0)}, 0, vcc
    v_mov_b32 {v(vARR)}, 0
    """)


def marks(k, z, base, total, first=160):
    t = 88
    n = -(-total // ((256 - first) * 4096))
    m = k.mark()
    for i in range(4):
        k(f"v_mov_b32 {v(z + i)}, -1")
    k(f"""
    v_lshlrev_b32 {v(z + 4)}, 4, v0
    s_sub_u32 {s(t)}, s2, {first}
    s_mul_i32 {s(t)}, {s(t)}, {n * 4096}
    s_min_u32 {s(t)}, {s(t)}, {total - n * 4096}
    s_add_u32 {s(t)}, {s(t)}, {base}
    """)
    for e in range(n):
        if e:
            k(f"s_add_u32 {s(t)}, {s(t)}, 4096")
        tok = k(f"buffer_store_dwordx4 {v(z, 4)}, {v(z + 4)}, {srd(SWS)}, {s(t)} offen sc1")
    return vm_items(k.cut(m)), tok


def x2_marks(k, c, z):
    m = k.mark()
    for i in range(4):
        k(f"v_mov_b32 {v(z + i)}, -1")
    k(f"s_lshl_b32 s88, {s(sQUAD)}, 14\n s_add_u32 s88, s88, {X2}")
    for e in range(4):
        k(f"buffer_store_dwordx4 {v(z, 4)}, {v(c.go)}, {srd(SWS)}, s88 offen offset:{1024 * e} sc1")
    return vm_items(k.cut(m))


class Gate:
    def __init__(self, inst, n):
        self.n = n
        self.big, self.off = 16384 * (inst // 4), 4 * (inst % 4)

    def arrive(self, k):
        k(f"v_mov_b32 {v(vARR)}, 1\n s_add_u32 {s(sC)}, {s(sAA)}, {self.big + 8192}")
        k(f"buffer_atomic_add {v(vARR)}, {v(vL0)}, {srd(SWS)}, {s(sC)} offen offset:{self.off} sc0 sc1")
        k.own("arr", id(self))

    def publish(self, k):
        last, cont = k.lab("gl"), k.lab("gc")
        k.own("arr", id(self), True)
        k(f"v_cmp_eq_u32 vcc, {self.n - 1}, {v(vARR)}\n s_cbranch_vccnz {last}\n {cont}:")
        cold(k, lambda: k(f"""
        {last}:
        s_add_u32 {s(sC)}, {s(sAA)}, {self.big}
        v_lshlrev_b32 {v(vS0)}, 10, v1
        v_mov_b32 {v(vARR)}, 1
        s_mov_b64 exec, 255
        buffer_store_dword {v(vARR)}, {v(vS0)}, {srd(SWS)}, {s(sC)} offen offset:{self.off} sc1
        s_mov_b64 exec, -1
        s_branch {cont}
        """))

    def poll(self):
        r = sWA + (1 if self.big else 0) * 2
        return Poll(f"buffer_load_dword {v(vPOLL)}, {v(vL7)}, {srd(SWS)}, {s(r)} offen offset:{self.off} sc1", 255)


class Count:
    def __init__(self, inst, n):
        self.n, self.off = n, 4 * inst

    def arrive(self, k):
        k(f"""
        v_lshlrev_b32 {v(vS0)}, 3, {v(vL7)}
        v_mov_b32 {v(vARR)}, 1
        v_cndmask_b32 {v(vS0)}, {v(vL7)}, {v(vS0)}, {s(sM8, 2)}
        buffer_atomic_add {v(vARR)}, {v(vS0)}, {srd(SWS)}, {s(sAA)} offen offset:{self.off} sc1
        """)

    def poll(self):
        return Poll(f"buffer_load_dword {v(vPOLL)}, {v(vL7)}, {srd(SWS)}, {s(sWA)} offen offset:{self.off} sc1", 255, self.n)


def flags_zero(k, R):
    R = R.fork()
    z = R.get(4, 4)
    o = R.get()
    skip = k.lab("fz")
    k(f"s_cmp_lg_u32 s2, 255\n s_cbranch_scc1 {skip}")
    for i in range(4):
        k(f"v_mov_b32 {v(z + i)}, 0")
    k(f"v_lshlrev_b32 {v(o)}, 4, v0")
    for e in (0, 1, 2, 4, 5, 6):
        tok = k(f"s_mov_b32 s88, {FL + 4096 * e}\n buffer_store_dwordx4 {v(z, 4)}, {v(o)}, {srd(SWS)}, s88 offen sc1")
    k(f"{skip}:")
    return tok


def flags_ready(k, tok):
    skip = k.lab("fr")
    k(f"s_cmp_lg_u32 s2, 255\n s_cbranch_scc1 {skip}\n v_mov_b32 {v(vS0)}, 1")
    k.wait(tok)
    k(f"""
    s_barrier
    s_mov_b64 exec, 1
    global_store_dword {v(vARR)}, {v(vS0)}, {s(P_DBG, 2)} sc1
    s_mov_b64 exec, -1
    {skip}:
    """)


class Poll:
    def __init__(self, load, mask, want=1):
        self.load, self.mask, self.want = load, mask, want

    def issue(self, k):
        self.tok = k(self.load)
        k.own("poll", id(self))

    def check(self, k):
        spin, loop, cont = k.lab("ps"), k.lab("pl"), k.lab("pc")
        k.own("poll", id(self), True)
        test = f"v_cmp_gt_u32 vcc, {self.want}, {v(vPOLL)}\n s_and_b64 vcc, vcc, {s(sM8, 2)}\n"
        if self.mask != 255:
            test += f"s_and_b64 vcc, vcc, {self.mask}\n"
        k(test + f"s_cbranch_scc1 {spin}\n {cont}:")
        cold(k, lambda: k(f"""
        {spin}:
        s_mov_b32 {s(sC + 2)}, {SPIN_MAX}
        {loop}:
        {self.load}
        s_waitcnt vmcnt(0)
        s_sub_u32 {s(sC + 2)}, {s(sC + 2)}, 1
        s_cbranch_scc1 {cont}
        {test}
        s_cbranch_scc1 {loop}
        s_branch {cont}
        """))

    def wait(self, k):
        self.issue(k)
        self.check(k)


def poll_ready():
    return Poll(f"global_load_dword {v(vPOLL)}, {v(vARR)}, {s(P_DBG, 2)} sc1", 1)


def st1_mark(k, R):
    T = R.fork()
    z, o = T.get(), T.get()
    k(f"""
    v_mov_b32 {v(z)}, {OOB}
    v_lshlrev_b32 {v(o)}, 2, v0
    v_cmp_gt_u32 vcc, 16, v0
    v_cndmask_b32 {v(o)}, {v(z)}, {v(o)}, vcc
    v_mov_b32 {v(z)}, -1
    s_lshl_b32 {s(97)}, s2, 6
    s_add_u32 {s(97)}, {s(97)}, {ST + ST_SZ}
    """)
    return k(f"buffer_store_dword {v(z)}, {v(o)}, {srd(SWS)}, {s(97)} offen sc1")


def st1_check(k, q, st, chunk):
    entry = k.lab("sl")
    assert q.st_tok[1:] == (1, chunk)
    tok = q.st_tok
    k.order(tok[0])
    k(f"""
    {entry}:
    v_max3_u32 {v(vS0)}, {v(st)}, {v(st + 1)}, {v(st + 2)}
    v_max3_u32 {v(vS0)}, {v(vS0)}, {v(st + 3)}, {v(st + 4)}
    v_max_u32 {v(vS0)}, {v(vS0)}, {v(st + 5)}
    v_cmp_eq_u32 vcc, -1, {v(vS0)}
    """)
    retry(k, entry, lambda: q_stats_load(k, q, st, 1, chunk, "sc1"), "st", count=9 + chunk)
    q.st_tok = tok


def x_touch(k, R, chunk):
    d, e = R.get(), R.get()
    t = sT
    k(f"""
    s_mul_i32 {s(t)}, {s(sI8)}, 18
    s_lshl_b32 {s(t + 1)}, {s(sBLK)}, 7
    s_add_u32 {s(t)}, {s(t)}, {s(t + 1)}
    s_add_u32 {s(t)}, {s(t)}, {s(sPAR)}
    s_add_u32 {s(t)}, {s(t)}, {1024 * chunk - 16}
    s_max_i32 {s(t)}, {s(t)}, 0
    s_mul_i32 {s(t)}, {s(t)}, 1280
    v_lshrrev_b32 {v(d)}, 1, v0
    v_min_u32 {v(d)}, 89, {v(d)}
    v_mul_u32_u24 {v(e)}, 6554, {v(d)}
    v_lshrrev_b32 {v(e)}, 16, {v(e)}
    v_mul_u32_u24 {v(e)}, 1280, {v(e)}
    v_lshl_add_u32 {v(d)}, {v(d)}, 7, {v(e)}
    buffer_load_dword {v(d)}, {v(d)}, {srd(SX)}, {s(t)} offen
    """)


def w_touch(k, R):
    t = sT
    m = k.mark()
    k(f"""
    s_lshr_b32 {s(t)}, s2, 3
    s_mul_i32 {s(t)}, {s(t)}, 3840
    s_and_b32 {s(t + 1)}, s2, 1
    s_mul_i32 {s(t + 1)}, {s(t + 1)}, 640
    s_add_u32 s88, {s(t)}, {s(t + 1)}
    """)
    ld = []
    for e in range(2):
        d, q, r = R.get(), R.get(), R.get()
        if e:
            k(f"v_lshrrev_b32 {v(d)}, 2, v0\n v_add_u32 {v(d)}, 256, {v(d)}\n v_min_u32 {v(d)}, 299, {v(d)}")
        else:
            k(f"v_mov_b32 {v(d)}, v0")
        k(f"""
        v_mul_u32_u24 {v(q)}, 13108, {v(d)}
        v_lshrrev_b32 {v(q)}, 16, {v(q)}
        v_mul_u32_u24 {v(r)}, 4370, {v(d)}
        v_lshrrev_b32 {v(r)}, 16, {v(r)}
        v_mul_u32_u24 {v(q)}, 640, {v(q)}
        v_mul_u32_u24 {v(r)}, {31 * 3840}, {v(r)}
        v_lshlrev_b32 {v(d)}, 7, {v(d)}
        v_add3_u32 {v(d)}, {v(d)}, {v(q)}, {v(r)}
        """)
        ld.append(f"buffer_load_dword {v(d)}, {v(d)}, {srd(SW)}, s88 offen")
    return k.cut(m), ld


def code_prefetch(k, R, start, end):
    d = R.get()
    k(f"""
    s_bfe_u32 {s(sC)}, s2, 0x40003
    s_lshl_b32 {s(sC)}, {s(sC)}, 13
    v_lshrrev_b32 {v(d)}, 2, v0
    v_lshl_add_u32 {v(d)}, {v(d)}, 7, {s(sC)}
    v_min_u32 {v(d)}, {end}-{start}, {v(d)}
    global_load_dword {v(d)}, {v(d)}, s[42:43]
    """)


def page_touch(k, R):
    d = R.get(4)
    skip = k.lab("pt")
    k(f"""
    s_cmp_lg_u32 {s(sWAVE)}, 2
    s_cbranch_scc1 {skip}
    v_lshlrev_b32 {v(d)}, 18, v1
    v_add_u32 {v(d + 1)}, {64 << 18}, {v(d)}
    buffer_load_dword {v(d + 2)}, {v(d)}, {srd(SWS)}, 0 offen sc1
    buffer_load_dword {v(d + 3)}, {v(d)}, {srd(SOUT)}, 0 offen sc1
    buffer_load_dword {v(d + 1)}, {v(d + 1)}, {srd(SWS)}, 0 offen sc1
    {skip}:
    """)
```

```python
import sys, json
from tasks import *
NAME = "interleave_layers__sliding_local_dilated__ssm_conv_s4d__prompt"
HEAD = open(f"/code/{NAME}.s.ref").read().split("; Override")[0]
SC = "sc1"
OPT = {}
OF, RS = 216, 208


def atom(k, fn):
    return [grab(k, fn)[0]]


def each(k, fn):
    return grab(k, fn)[0]


def if_conv(k, fn, other=None):
    no, end = k.lab("nc"), k.lab("ec")
    k(f"s_cmp_ge_u32 s2, 160\n s_cbranch_scc1 {no}")
    fn()
    if other is not None:
        k(f"s_branch {end}\n {no}:")
        other()
        k(f"{end}:")
    else:
        k(f"{no}:")


def if_spare(k, fn):
    no = k.lab("ns")
    k(f"s_cmp_lt_u32 s2, 160\n s_cbranch_scc1 {no}")
    fn()
    k(f"{no}:")


def mark_epoch(k, base, total, gate):
    k.put(flat(marks(k, 100, base, total)[0]))
    k("s_waitcnt vmcnt(0)\n s_barrier")
    gate.arrive(k)
    gate.publish(k)


def if_s2(k, fn):
    skip = k.lab("s2")
    k(f"s_sub_u32 {s(sC + 3)}, s2, 160\n s_cmp_ge_u32 {s(sC + 3)}, 64\n s_cbranch_scc1 {skip}")
    fn()
    k(f"{skip}:")


def s2_begin(k, chunk):
    k(f"s_sub_u32 s3, s2, 160\n s_and_b32 s3, s3, 63\n s_add_u32 s3, s3, {64 * chunk}")
    s2_load(k, OF, 3, SC)


def s2_end(k):
    if_s2(k, lambda: s2_finish(k, OF, 3, KL0, SC))


CDX, CDS = (176, 180), 184
OAD = [200, 201, 202, 203, 204, 205, 206, 207, 214, 215]
HELD = {i: 144 + 4 * i for i in range(8)}
G_P, G_M1, G_M2, G_M3, G_C0, G_C1 = Count(0, 32), Count(1, 32), Gate(2, 12), Gate(3, 12), Gate(4, 20), Gate(5, 20)


def delayed(lst, n):
    p = next(i for i, e in enumerate(lst) if e.kind == "pseudo")
    return lst[:p] + [n] + lst[p:]


def conv_phase(k, c, x, R, layer, gt):
    R = R.fork()
    xf, ds1 = R.get(16, 4), R.get(16, 4)
    bufs = [R.get(16, 4) for _ in range(6)]
    accs = [ds1, bufs[0], bufs[1], bufs[0], bufs[2], bufs[3], bufs[4], bufs[5]]
    tmp = R.get(4)
    pool = [R.get(4, 4) for _ in range(9)]
    dx1 = (R.get(4, 4), R.get(4, 4))
    scr = Regs(bufs[0], bufs[2])
    held = {i: bufs[2] + 4 * i for i in range(16)}
    assert held[0] == HELD[0] and held[8] == CDX[0]
    c_check(k, c, tmp, CDX, CDS, layer, 0, SC)
    stamp(k, "chk0")
    c_norm(k, c, tmp, xf, CDX, CDS, 0)
    k("s_waitcnt lgkmcnt(0)\n s_barrier")
    stamp(k, "norm0")
    m = c_mfma(k, c, tri_ops(0) + cross_ops(), accs, pool, range(8), 4, held, 40)
    hs = [c_horner(k, c, accs[t], t, tmp) for t in range(4)]
    after = {1: each(k, lambda: [k_frag(k, c, held[i], i) for i in range(8, 16)]), 4: hs[0], 12: hs[1], 24: hs[2]}
    mtok = None
    vm = {}
    if layer == 0:
        mk2 = x2_marks(k, c, dx1[0])
        mtok = mk2[-1][-1].tok
        vm.update({5 + 6 * i: [e] for i, e in enumerate(mk2)})
    vm[OPT.get("cl1", 40)] = vm_items(each(k, lambda: c_load(k, c, dx1, ds1, layer, 1, SC)))
    q = list(hs[3])
    ytok = hs[3][-1].tok
    q += [3] + atom(k, lambda: (k.wait(ytok, mtok), k("s_barrier")))
    q += delayed(each(k, lambda: c_out(k, c, scr, xf, layer, 0, SC)), 4)
    if layer == 0:
        q += atom(k, lambda: G_C0.arrive(k))
    held1 = {i: bufs[0] + 4 * i for i in range(8)}
    q += each(k, lambda: [k_frag(k, c, held1[i], i) for i in range(8)])
    after[40] = q
    q = atom(k, lambda: c_check(k, c, tmp, dx1, ds1, layer, 1, SC))
    q += each(k, lambda: c_norm(k, c, tmp, xf, dx1, ds1, 1))
    if layer == 0:
        q += atom(k, lambda: G_C0.publish(k))
        q += each(k, lambda: x_bases(k, x, 0))
    after[OPT.get("cn1", 70)] = q
    m, rest = weave(m, after, vm=vm)
    pos = {id(e): p for p, e in enumerate(m)}
    mf = [p for p, e in enumerate(m) if e.kind == "mfma"]
    assert pos[id(hs[1][-1])] < mf[24] and pos[id(after[1][-1])] < mf[12]
    if OPT.get("cst") and layer == OPT["cst"] - 1:
        pts = (1, 20, 40, 56, 69, 75, 90)
        sts = [each(k, lambda: stamp(k, f"m{n}")) for n in pts]
        for n, e in reversed(list(zip(pts, sts))):
            m[mf[n]:mf[n]] = e
    k.put(m + rest)
    k("s_waitcnt lgkmcnt(0)\n s_barrier")
    stamp(k, "c0x")
    m = c_mfma(k, c, tri_ops(4), accs, pool + list(dx1), [], 4, held1)
    hs = [c_horner(k, c, accs[4 + t], t, tmp) for t in range(4)]
    out_regs = Regs(accs[4], accs[6])
    q = list(hs[1])
    ytok = hs[1][-1].tok
    o0 = each(k, lambda: c_out(k, c, out_regs, xf, layer, 1, SC, (0,)))
    p = next(i for i, e in enumerate(o0) if e.kind == "pseudo")
    q += [2] + atom(k, lambda: (k.wait(ytok), k("s_barrier"))) + o0[:p]
    after = {4: hs[0], 12: q, 25: hs[2] + o0[p:]}
    p_c = G_C0.poll()
    if layer == 0:
        vm = {OPT.get("pc0", 26): atom(k, lambda: p_c.issue(k))}
    m, rest = weave(m, after, vm=vm if layer == 0 else {})
    k.put(m + rest + hs[3])
    k("s_waitcnt lgkmcnt(0)")
    if layer == 0:
        p_c.check(k)
    k("s_barrier")
    stamp(k, "c1")
    body = each(k, lambda: c_out(k, c, out_regs, xf, layer, 1, SC, (1,)))
    if layer == 0:
        items, gt[0] = x_dma_items(k, x, 0, SC)
        k.put(body[:4] + flat(items) + body[4:])
        G_C1.arrive(k)
        gt[1] = x_dma(k, x, 1, SC)
    else:
        k.put(body)
    stamp(k, "out1")


def main_kernel():
    k = Kernel(NAME + "_kernel")
    k.lab = lambda p="L", c=[0]: (c.__setitem__(0, c[0] + 1), f"{p}_{c[0]}")[1]
    end = "L_end"
    k("s_getpc_b64 s[42:43]\n L_start:")
    stamp(k, "first")
    box = {}
    T = Regs(84)

    def early():
        code_prefetch(k, Regs(159), "L_start", "L_last")
        roles(k)
        box["st"] = prep_issue(k, T, KL0)
    prologue(k, 256, end, early)
    stamp(k, "start")
    R = Regs(8)
    st = box["st"]
    PRM, KACC, XS = 232, 216, 120
    ztok = flags_zero(k, Regs(120))
    kgen_issue(k, PRM, 0)
    st["toks"] = [k(l) for l in st["ld"]]
    prep_addr(k, T, KL0, st)
    assert T.n <= 120
    if OPT.get("t0", 1):
        x_touch(k, Regs(204), 0)
    sync_setup(k)
    const_init(k, Regs(140))
    q = q_setup(k, R)
    o = o_setup(k, R)
    c = c_setup(k, R)
    XR = R.fork()
    x = x_addr(k, R, 0, Regs(140))
    assert R.n == 80, R.n
    g = q_regs(R.fork())
    A = Regs(g.acc)
    wa = w_addr(k, Regs(200))
    x_bases(k, x, 0)
    k(f"s_mov_b32 {s(sTRY)}, 0x10000\n s_mov_b32 {s(sREDO)}, 0x1000")
    stamp(k, "setup")
    NW0 = OPT.get("nw0", 14)
    gt = {}

    def E(fn):
        return lambda: each(k, fn)

    def x0(dst, own=False):
        out = []
        for G in range(5):
            items, dst[G] = x_dma_items(k, x, G, "", None, own)
            out += items
        return out

    def small():
        return vm_items(each(k, lambda: (zero_sa(k, Regs(140), SC), st1_mark(k, Regs(142)))))

    def w_store():
        p_rdy = poll_ready()
        tok = prep_finish(k, st, SC)
        p_rdy.issue(k)
        stamp(k, "wst")

        def arrive():
            k.wait(tok)
            p_rdy.check(k)
            k("s_barrier")
            G_P.arrive(k)
            stamp(k, "arrP")
        return arrive

    def start_conv():
        items = x0(gt, True)
        b0, b1, b2 = OPT.get("kd", (0, 9, 17))
        k.put(flat(items[:b0]))

        def f():
            kg = KGen(k, Regs(172, 196), KACC, PRM, AT0, KL0, Regs(242))
            kg.setup(0)
            kg.chains()
            kg.mfmas(True, each(k, lambda: kg.setup(1)), items[b0:b1])
            kg.chains()
            kg.mfmas(False, each(k, lambda: kg.setup(2)), items[b1:b2])
            kg.chains()
            kg.mfmas(False, [], items[b2:])
        body = each(k, f)
        n0, n1, n2, n3 = OPT.get("kp", (180, 420, 660, 740))
        mk = marks(k, 144, MK0, 2 * XSZ, 0)[0]
        p_p = G_P.poll()

        def safe(n):
            while any(("s", "exec") in e.defs for e in body[max(n - 2, 0):n + 1]):
                n += 1
            return n

        def seg(lo, hi, it):
            lo, hi = safe(lo), safe(hi)
            k.put(spread(body[lo:hi], it, max((hi - lo) // (len(it) + 1), 1)))
        seg(0, n0, [])
        arrive = w_store()
        seg(n0, n1, atom(k, lambda: kgen_issue(k, PRM, 1)) + atom(k, lambda: rows_load(k, Regs(XS))) + small())
        arrive()
        seg(n1, n2 - 60, mk)
        box["stok"] = rows_stats(k, XS, SC)
        seg(n2 - 60, n2, [])
        p_p.issue(k)
        seg(n2, n3, [])
        stamp(k, "preP")
        p_p.check(k)
        k("s_barrier")
        stamp(k, "wP")
        seg(n3, len(body), vm_items(each(k, lambda: w_load(k, wa, 0, NW0, SC))))

    def start_other():
        flags_ready(k, ztok)
        items = x0({})
        mk = marks(k, 144, MK0, 2 * XSZ, 0)[0]
        wo = [wo_prep_issue(k, Regs(160 + 20 * r), AT0 + 8192 * r, r) for r in range(2)]
        for i in range(16):
            k(f"v_mov_b32 {v(KACC + i)}, 0")
        arrive = w_store()
        rows_load(k, Regs(XS))
        arrive()
        for w_ in wo:
            wo_prep_finish(k, w_, SC)
        k.put(flat(items + small() + mk))
        last = rows_stats(k, XS, SC)
        stamp(k, "mk1")
        k.wait(last)
        G_P.poll().wait(k)
        k("s_barrier")
        w_load(k, wa, 0, NW0, SC)
    if_conv(k, start_conv, start_other)
    if OPT.get("t1", 1):
        x_touch(k, Regs(206), 1)
    stamp(k, "kg1")
    for layer in range(2):
        nxt = {}
        sc = SC if layer else ""

        def dma(dst, *Gs):
            def f():
                out = []
                for G in Gs:
                    items, dst[G] = x_dma_items(k, x, G, sc)
                    out += items
                return out
            return f

        def both(*fs):
            return lambda: [e for f in fs for e in f()]

        def redo(entry, chunk, ngroups):
            def reload():
                k("s_waitcnt vmcnt(0) lgkmcnt(0)\n s_barrier")
                x_bases(k, x, chunk)
                for G in range(ngroups):
                    x_dma(k, x, G, SC)
            return lambda: retry(k, entry, reload, "g", sREDO, count=11 + chunk, masked=False)
        stats = lambda ch: E(lambda: q_stats_load(k, q, g.st, layer, ch, SC))
        if layer == 0:
            p_m = G_M1.poll()
            side = {0: both(E(lambda: w_load(k, wa, NW0, 36, SC)), lambda: atom(k, lambda: p_m.issue(k)),
                            E(lambda: w_load(k, wa, 36, 40, SC)), E(lambda: x_bases(k, x, 1))),
                    30: both(stats(0), dma(nxt, 0, 1))}
            if NW0 >= 16:
                side.update({14: dma(nxt, 0), 30: both(stats(0), dma(nxt, 1))})
            pre = {-1: lambda: k.wait(box["stok"]), "first": lambda: G_M1.arrive(k), 3: lambda: p_m.check(k)}
            left = q_gemm(k, q, x, g, gt, True, pre, side, (0, 1, 2, 3), False,
                          {0: lambda: each(k, lambda: at_zero(k, Regs(RS))) + k_expand(k, KACC, PRM + 9, 242, KL0)})
            wol = vm_items(each(k, lambda: wo_load(k, o, SC)))
            rd = None
        else:
            entry = k.lab("ge")
            k(f"{entry}:")

            p_m, p_c = G_M3.poll(), G_C1.poll()
            pre = {0: lambda: G_C1.publish(k), 1: lambda: p_m.check(k),
                   3: lambda: (st1_check(k, q, g.st, 0), p_c.check(k))}
            side = {0: both(dma(gt, 2), lambda: atom(k, lambda: p_m.issue(k)), dma(gt, 3, 4), E(lambda: x_bases(k, x, 1))),
                    20: both(stats(0), lambda: atom(k, lambda: p_c.issue(k))),
                    30: both(E(lambda: s2_begin(k, 1)), dma(nxt, 0, 1))}
            left = q_gemm(k, q, x, g, gt, False, pre, side, (0, 1, 2, 3), True, {0: E(lambda: at_zero(k, Regs(RS)))})
            rd = redo(entry, 0, 2)
        stamp(k, "g0")
        left += vm_items(dma(nxt, 2)())
        if layer == 0:
            left += wol[:OPT.get("woa", 5)]
        if layer == 1:
            s2_end(k)
        k.put(spread(each(k, lambda: q_attn(k, q, A, layer, 0, SC, rd)), left, 8, 12))
        stamp(k, "a0")
        pre = {}
        side = {OPT.get("ol0", 26): E(lambda: (o_load(k, o, OF, layer, 0, SC), o_resid_load(k, o, RS, layer, 0, SC)))}
        if layer == 0:
            side[0] = both(dma(nxt, 3, 4), stats(1), lambda: wol[OPT.get("woa", 5):])
        else:
            entry = k.lab("ge")
            k(f"{entry}:")
            side[0] = dma(nxt, 3, 4)
            side[18] = stats(1)
            pre[3] = lambda: st1_check(k, q, g.st, 1)
            rd = redo(entry, 1, 3)
        alu = {10: E(lambda: (layer == 0 and o_scalars(k), o_addr(k, o, OAD, 199)))}
        left = q_gemm(k, q, x, g, nxt, False, pre, side, (0, 1, 2, 3), layer == 1, alu)
        stamp(k, "g1")
        k.put(spread(each(k, lambda: q_attn(k, q, A, layer, 1, SC, rd)), left, 8, 12))
        stamp(k, "a1")
        o_compute(k, o, A, OF, RS, layer, 0, SC, (),
                  each(k, lambda: (o_load(k, o, OF, layer, 1, SC), o_resid_load(k, o, RS, layer, 1, SC))),
                  each(k, lambda: [k_frag(k, c, HELD[i], i) for i in range(8)]))
        stamp(k, "o0")
        c_zero(k, c, Regs(176))
        if layer == 0:
            x = x_addr(k, XR.fork(), 1, Regs(176))
        cl = each(k, lambda: c_load(k, c, CDX, CDS, layer, 0, SC))
        if OPT.get("clate", 1):
            o_compute(k, o, A, OF, RS, layer, 1, SC, (), cl)
        else:
            o_compute(k, o, A, OF, RS, layer, 1, SC, cl)
        stamp(k, "o1")
        gt = {}

        def no_conv():
            if layer == 0:
                mark_epoch(k, MK1 + XSZ, 2 * XSZ, G_M3)
                stamp(k, "mk3")
                G_C0.poll().wait(k)
                k("s_barrier")
                stamp(k, "hint0")
                s2_begin(k, 0)
                x_bases(k, x, 0)
                tk = [x_dma(k, x, G, SC) for G in range(2)]
                s2_end(k)
                for G in range(2):
                    gt[G] = (gt[G], tk[G])
        if_conv(k, lambda: conv_phase(k, c, x, R, layer, gt), no_conv)
        stamp(k, "cend")
    stamp_flush(k, 0)
    k(f"{end}:\n s_endpgm")
    k.put(k.cold)
    k("L_last:\n s_endpgm")
    return k


def build(path):
    k = main_kernel()
    t, d = kernel_text(k, 256, 256)
    print("regs", k.maxregs(), "instrs", len(k.ins), file=sys.stderr)
    txt = HEAD + "; @launch grid=(256,1,1) block=(256,1,1) lds=163840\n"
    txt += '.amdgcn_target "amdgcn-amd-amdhsa--gfx950"\n' + t + d
    open(path, "w").write(txt)


if __name__ == "__main__":
    mode = sys.argv[1] if len(sys.argv) > 1 else ""
    STAMPS["on"] = mode in ("st", "cyc")
    STAMPS["o"] = "o" in sys.argv[2:]
    STAMPS["r"] = "r" in sys.argv[2:]
    import tasks
    for a_ in sys.argv[2:]:
        if a_.startswith("room="):
            tasks.ROOM[0] = int(a_[5:])
        if "=" in a_:
            OPT[a_.split("=")[0]] = eval(a_.split("=")[1])
    if mode == "cyc":
        STAMPS["op"] = "s_memtime"
    build("v2.s")
    json.dump(STAMPS["names"], open("stamps.json", "w"))
```

```python
from asmlib import *
from layout import *

SX, SW, SWO, SWS, SOUT = 4, 8, 12, 16, 20
sWAVE = 24
sT = 25
P_X, P_W, P_WO, P_U, P_LA, P_AI, P_CR, P_CI, P_LDT, P_DSK, P_OUT, P_DBG, P_WS = range(44, 70, 2)
sHP, sPAR, sBLK, sCB, sOG, sQUAD = 70, 71, 72, 73, 74, 75
sM63 = 76
sHALO = 78
sLO32 = 80
sC = 82
vTID, vLANE = 0, 1
vS0, vL7, vARR, vL0, vPOLL = 2, 4, 5, 6, 7
sI8 = 3
sTRY, sREDO = 38, 39
OOB = 0x40000000
LOG2E = 1.4426950408889634


def f2i(x):
    import struct
    return "0x%08x" % struct.unpack("<I", struct.pack("<f", x))[0]


def srd(n):
    return s(n, 4)


class Regs:
    def __init__(self, start, end=256):
        self.n = start
        self.end = end

    def get(self, c=1, al=None):
        if al is None:
            al = 2 if c > 1 else 1
        self.n = (self.n + al - 1) // al * al
        r = self.n
        self.n += c
        assert self.n <= self.end, "out of registers"
        return r

    def fork(self):
        return Regs(self.n, self.end)


def prologue(k, nwg, end, early=None):
    k(f"""
    s_cmp_ge_u32 s2, {nwg}
    s_cbranch_scc1 {end}
    s_load_dwordx16 s[44:59], s[0:1], 0
    s_load_dwordx8 s[60:67], s[0:1], 64
    s_load_dwordx2 s[68:69], s[0:1], 96
    v_and_b32 v1, 63, v0
    v_lshrrev_b32 v2, 6, v0
    v_readfirstlane_b32 {s(sWAVE)}, v2
    """)
    if early:
        early()
    k(f"""
    s_mov_b32 {s(sM63)}, 0
    s_mov_b32 {s(sM63 + 1)}, 0x80000000
    s_mov_b32 {s(sLO32)}, -1
    s_mov_b32 {s(sLO32 + 1)}, 0
    s_mov_b32 {s(sHALO)}, 0xfe0000fe
    s_mov_b32 {s(sHALO + 1)}, 0xfe0000fe
    """)
    for d, sz in ((SX, XSZ), (SW, 640 * 1920 * 2), (SWO, 640 * 640 * 2), (SWS, WS_USED), (SOUT, XSZ)):
        k(f"s_mov_b32 {s(d + 2)}, {sz}\n s_mov_b32 {s(d + 3)}, 0x20000")
    for d, p in ((SX, P_X), (SW, P_W), (SWO, P_WO), (SWS, P_WS), (SOUT, P_OUT)):
        k(f"s_mov_b32 {s(d)}, {s(p)}\n s_and_b32 {s(d + 1)}, {s(p + 1)}, 0xffff")


STAMPS = {"on": False, "names": []}


def stamp(k, name, defer=False):
    if STAMPS.get("probe"):
        n = STAMPS.setdefault("seen", {})
        n[name] = n.get(name, 0) + 1
        if name == "first":
            k("s_memrealtime s[40:41]\n s_waitcnt lgkmcnt(0)\n v_mov_b32 v3, s40")
        if (name, n[name]) in STAMPS["probe"]:
            k("s_memrealtime s[40:41]\n s_waitcnt lgkmcnt(0)")
        return
    if not STAMPS["on"]:
        return
    if not hasattr(k, "stamps"):
        k.stamps = []
        k("v_mov_b32 v3, 0")
    op = STAMPS.get('op', 's_memrealtime')
    if getattr(k, "pend", None) is not None:
        k(f"v_writelane_b32 v3, s40, {k.pend}")
        k.pend = None
    if defer:
        k(f"{op} s[40:41]")
        k.pend = len(k.stamps)
    else:
        k(f"{op} s[40:41]\n s_waitcnt lgkmcnt(0)\n v_writelane_b32 v3, s40, {len(k.stamps)}")
    k.stamps.append(name)


def stamp_flush(k, slot):
    if STAMPS.get("probe"):
        k(f"""
        s_waitcnt vmcnt(0) lgkmcnt(0)
        v_readfirstlane_b32 s41, v3
        v_not_b32 v3, v3
        v_mov_b32 v2, 0
        s_mov_b64 exec, 1
        global_atomic_umax v2, v3, {s(P_DBG, 2)} offset:32 sc1
        L_spin0:
        s_memrealtime s[26:27]
        s_waitcnt lgkmcnt(0)
        s_sub_u32 s26, s26, s41
        s_cmp_lt_u32 s26, 5600
        s_cbranch_scc1 L_spin0
        global_load_dword v3, v2, {s(P_DBG, 2)} offset:32 sc1
        v_not_b32 v3, v3
        v_readfirstlane_b32 s41, v3
        s_sub_u32 s40, s40, s41
        s_lshl_b32 s40, s40, 2
        s_add_u32 s40, s40, 6000
        L_spin:
        s_memrealtime s[26:27]
        s_waitcnt lgkmcnt(0)
        s_sub_u32 s26, s26, s41
        s_cmp_lt_u32 s26, s40
        s_cbranch_scc1 L_spin
        """)
        return
    if not STAMPS["on"]:
        return
    k(f"""
    s_lshl_b32 s40, s2, 2
    s_add_u32 s40, s40, {s(sWAVE)}
    s_lshl_b32 s40, s40, 8
    s_add_u32 s40, s40, {DBG + slot * 262144}
    v_lshlrev_b32 v2, 2, v1
    buffer_store_dword v3, v2, {srd(SWS)}, s40 offen
    """)
    STAMPS["names"].append((slot, k.name, list(k.stamps)))


def roles(k):
    t = sT
    k(f"""
    s_and_b32 {s(t)}, s2, 7
    s_lshr_b32 {s(t + 1)}, s2, 3
    s_and_b32 {s(t + 2)}, {s(t + 1)}, 3
    s_lshr_b32 {s(t + 3)}, {s(t + 1)}, 4
    s_lshl_b32 {s(t + 3)}, {s(t + 3)}, 2
    s_add_u32 {s(sI8)}, {s(t + 2)}, {s(t + 3)}
    s_lshl_b32 {s(t + 2)}, {s(sI8)}, 2
    s_lshr_b32 {s(sHP)}, 0x75206431, {s(t + 2)}
    s_and_b32 {s(sHP)}, {s(sHP)}, 7
    s_and_b32 {s(t + 2)}, {s(t)}, 1
    s_lshl_b32 {s(t + 2)}, {s(t + 2)}, 3
    s_add_u32 {s(sHP)}, {s(sHP)}, {s(t + 2)}
    s_bfe_u32 {s(sPAR)}, {s(t + 1)}, 0x10002
    s_bfe_u32 {s(t + 3)}, {s(t + 1)}, 0x10003
    s_and_b32 {s(sBLK)}, {s(t)}, 6
    s_add_u32 {s(sBLK)}, {s(sBLK)}, {s(t + 3)}
    s_and_b32 {s(sCB)}, {s(t + 1)}, 7
    s_lshr_b32 {s(t + 3)}, {s(t + 1)}, 3
    s_lshl_b32 {s(sOG)}, {s(t)}, 2
    s_add_u32 {s(sOG)}, {s(sOG)}, {s(t + 3)}
    s_mul_i32 {s(sQUAD)}, {s(t)}, 20
    s_add_u32 {s(sQUAD)}, {s(sQUAD)}, {s(t + 1)}
    """)


def divc(k, dq, dr, src, c, mul, tmp_s):
    k(f"""
    v_mul_u32_u24 {v(dq)}, {mul}, {v(src)}
    v_lshrrev_b32 {v(dq)}, 16, {v(dq)}
    v_mul_u32_u24 {v(dr)}, {c}, {v(dq)}
    v_sub_u32 {v(dr)}, {v(src)}, {v(dr)}
    """)


def sdivc(k, dq, dr, src, c):
    mul = (65536 + c - 1) // c
    k(f"""
    s_mul_i32 {s(dq)}, {s(src)}, {mul}
    s_lshr_b32 {s(dq)}, {s(dq)}, 16
    s_mul_i32 {s(dr)}, {s(dq)}, {c}
    s_sub_u32 {s(dr)}, {s(src)}, {s(dr)}
    """)


def prep_issue(k, R, lds0):
    st = {}
    t = sT
    q = R.get()
    k(f"s_min_u32 {s(t + 2)}, s2, 239")
    sdivc(k, t, t + 1, t + 2, 6)
    k(f"""
    s_mul_i32 {s(t + 2)}, {s(t)}, {16 * 3840}
    s_mul_i32 {s(t + 3)}, {s(t + 1)}, 640
    s_add_u32 {s(t + 2)}, {s(t + 2)}, {s(t + 3)}
    s_lshl_b32 {s(t + 3)}, {s(sWAVE)}, 10
    """)
    ld = []
    for e in range(3):
        o = R.get()
        k(f"v_add_u32 {v(o)}, {256 * e}, v0")
        if e == 2:
            k(f"v_min_u32 {v(o)}, 639, {v(o)}")
        k(f"""
        v_mul_u32_u24 {v(q)}, 1639, {v(o)}
        v_lshrrev_b32 {v(q)}, 16, {v(q)}
        v_mul_u32_u24 {v(q)}, {3840 - 640}, {v(q)}
        v_lshl_add_u32 {v(o)}, {v(o)}, 4, {v(q)}
        """)
        ld.append(f"s_add_u32 m0, {s(t + 3)}, {lds0 + 4096 * e}\n buffer_load_dwordx4 {v(o)}, {srd(SW)}, {s(t + 2)} offen lds")
    st.update(ld=ld)
    return st


def rstd_nm(k, sm, sq, t0):
    k(f"""
    v_mul_f32 {v(t0)}, {f2i(1 / 640)}, {v(sm)}
    v_mul_f32 {v(sq)}, {f2i(1 / 640)}, {v(sq)}
    v_fma_f32 {v(sq)}, -{v(t0)}, {v(t0)}, {v(sq)}
    v_max_f32 {v(sq)}, 0, {v(sq)}
    v_add_f32 {v(sq)}, {f2i(1e-5)}, {v(sq)}
    v_rsq_f32 {v(sm)}, {v(sq)}
    v_mul_f32 {v(sq)}, -{v(t0)}, {v(sm)}
    """)


def prep_addr(k, R, lds0, st):
    t = sT
    P, hp, qi, ad, x1, x2 = (R.get() for _ in range(6))
    fr = R.get(12, 4)
    dst = [R.get() for _ in range(3)]
    adr = [R.get() for _ in range(3)]
    k(f"""
    s_lshr_b32 {s(t + 4)}, {s(t + 1)}, 1
    s_and_b32 {s(t + 5)}, {s(t + 1)}, 1
    s_lshl_b32 {s(t + 5)}, {s(t + 5)}, 3
    s_lshl_b32 {s(t + 6)}, {s(t)}, 10
    s_add_u32 {s(t + 6)}, {s(t + 6)}, {WF}
    s_cmp_ge_u32 s2, 240
    s_cselect_b32 {s(t + 6)}, {OOB}, {s(t + 6)}
    v_bfe_u32 {v(x2)}, v0, 2, 2
    v_bfe_u32 {v(x1)}, v0, 1, 1
    v_lshl_add_u32 {v(x1)}, {v(x1)}, 3, {v(x2)}
    v_mul_u32_u24 {v(x1)}, 640, {v(x1)}
    v_and_b32 {v(x2)}, 1, v0
    v_mul_u32_u24 {v(x2)}, 40, {v(x2)}
    v_add_u32 {v(ad)}, {v(x1)}, {v(x2)}
    v_add_u32 {v(ad)}, {lds0}, {v(ad)}
    """)
    for e in range(3):
        k(f"""
        v_lshrrev_b32 {v(P)}, 4, v0
        v_add_u32 {v(P)}, {16 * e}, {v(P)}
        v_cmp_gt_u32 vcc, 40, {v(P)}
        v_min_u32 {v(P)}, 39, {v(P)}
        """)
        divc(k, hp, qi, P, 5, 13108, None)
        k(f"""
        v_mul_u32_u24 {v(x1)}, 80, {v(hp)}
        v_lshl_add_u32 {v(x1)}, {v(qi)}, 3, {v(x1)}
        v_add_u32 {v(adr[e])}, {v(x1)}, {v(ad)}
        v_add_u32 {v(hp)}, {s(t + 5)}, {v(hp)}
        v_cmp_eq_u32 {s(sC, 2)}, 4, {v(qi)}
        v_mov_b32 {v(x1)}, {s(t + 4)}
        v_cndmask_b32 {v(x2)}, {v(qi)}, {v(x1)}, {s(sC, 2)}
        v_cndmask_b32 {v(x1)}, {v(x1)}, 3, {s(sC, 2)}
        v_lshl_add_u32 {v(hp)}, {v(hp)}, 2, {v(x2)}
        v_mul_u32_u24 {v(hp)}, {40 * 1024}, {v(hp)}
        v_lshl_add_u32 {v(hp)}, {v(x1)}, 8, {v(hp)}
        v_and_b32 {v(x1)}, 15, v0
        v_lshl_add_u32 {v(hp)}, {v(x1)}, 4, {v(hp)}
        v_mov_b32 {v(x1)}, {OOB}
        v_cndmask_b32 {v(hp)}, {v(x1)}, {v(hp)}, vcc
        v_add_u32 {v(dst[e])}, {s(t + 6)}, {v(hp)}
        """)
    st.update(fr=fr, dst=dst, adr=adr)


def prep_finish(k, st, sc=""):
    fr, dst, adr = (st[n] for n in ("fr", "dst", "adr"))
    k.wait(*st["toks"])
    k("s_barrier")
    for e in range(3):
        k(f"""
        ds_read_b64_tr_b16 {v(fr + 4 * e, 2)}, {v(adr[e])}
        ds_read_b64_tr_b16 {v(fr + 4 * e + 2, 2)}, {v(adr[e])} offset:{4 * 640}
        """)
    for e in range(3):
        tok = k(f"buffer_store_dwordx4 {v(fr + 4 * e, 4)}, {v(dst[e])}, {srd(SWS)}, 0 offen {sc}")
    return tok


def rows_load(k, R):
    xs = R.get(12, 4)
    q, r, o, x1 = (R.get() for _ in range(4))
    k(f"""
    v_lshrrev_b32 {v(q)}, 5, v0
    v_and_b32 {v(r)}, 31, v0
    v_mul_u32_u24 {v(q)}, 1280, {v(q)}
    v_lshl_add_u32 {v(o)}, {v(r)}, 4, {v(q)}
    v_mov_b32 {v(x1)}, {OOB}
    v_cmp_gt_u32 vcc, 16, {v(r)}
    s_mul_i32 s96, s2, {8 * 1280}
    buffer_load_dwordx4 {v(xs, 4)}, {v(o)}, {srd(SX)}, s96 offen
    v_cndmask_b32 {v(x1)}, {v(x1)}, {v(o)}, vcc
    buffer_load_dwordx4 {v(xs + 4, 4)}, {v(o)}, {srd(SX)}, s96 offen offset:512
    buffer_load_dwordx4 {v(xs + 8, 4)}, {v(x1)}, {srd(SX)}, s96 offen offset:1024
    """)
    return xs


def rows_stats(k, xs, sc=""):
    sm, sq, one, x1 = xs + 12, xs + 13, xs + 14, xs + 15
    k(f"v_mov_b32 {v(one)}, 0x3f803f80\n v_mov_b32 {v(sm)}, 0\n v_mov_b32 {v(sq)}, 0")
    for i in range(12):
        k(f"v_dot2c_f32_bf16 {v(sm)}, {v(xs + i)}, {v(one)}")
        k(f"v_dot2c_f32_bf16 {v(sq)}, {v(xs + i)}, {v(xs + i)}")
    so, x2 = xs, xs + 1
    k(f"""
    v_lshrrev_b32 {v(x1)}, 5, v0
    v_and_b32 {v(x2)}, 3, {v(x1)}
    v_lshrrev_b32 {v(x1)}, 2, {v(x1)}
    """)
    pad = [f"v_lshlrev_b32 {v(x1)}, 3, {v(x1)}", f"v_lshl_add_u32 {v(x1)}, {v(x2)}, 12, {v(x1)}",
           f"v_and_b32 {v(x2)}, 31, v0", f"v_cmp_eq_u32 vcc, 31, {v(x2)}"]
    for sh in (1, 2, 4, 8):
        for r_ in (sm, sq):
            k(f"v_add_f32_dpp {v(r_)}, {v(r_)}, {v(r_)} row_shr:{sh} row_mask:0xf bank_mask:0xf bound_ctrl:0")
        k(pad.pop(0))
    for r_ in (sm, sq):
        k(f"v_add_f32_dpp {v(r_)}, {v(r_)}, {v(r_)} row_bcast:15 row_mask:0xa bank_mask:0xf")
    k(f"""
    v_mov_b32 {v(x2)}, {OOB}
    v_cndmask_b32 {v(so)}, {v(x2)}, {v(x1)}, vcc
    s_lshl_b32 s96, s2, 4
    s_add_u32 s96, s96, {ST}
    """)
    rstd_nm(k, sm, sq, x1)
    return k(f"buffer_store_dwordx2 {v(sm, 2)}, {v(so)}, {srd(SWS)}, s96 offen {sc}")


def wo_prep_issue(k, R, lds0, rnd):
    t = sT
    q, r, o, x1, x2, ad, adw, d0, d4 = (R.get() for _ in range(9))
    k(f"s_sub_u32 {s(t + 8)}, s2, {160 - 96 * rnd}\n s_min_u32 {s(t + 8)}, {s(t + 8)}, 159")
    sdivc(k, t + 4, t + 5, t + 8, 20)
    sdivc(k, t + 6, t + 7, t + 5, 5)
    k(f"""
    s_lshl_b32 {s(t + 3)}, {s(sWAVE)}, 10
    s_lshr_b32 {s(t + 9)}, {s(t + 7)}, 1
    s_mul_i32 {s(t + 9)}, {s(t + 9)}, 20
    s_and_b32 {s(t + 10)}, {s(t + 7)}, 1
    s_lshl_b32 {s(t + 10)}, {s(t + 10)}, 3
    s_add_u32 {s(t + 9)}, {s(t + 9)}, {s(t + 10)}
    s_cmp_eq_u32 {s(t + 7)}, 4
    s_cselect_b32 {s(t + 9)}, 16, {s(t + 9)}
    s_cselect_b32 {s(t + 10)}, 20, 4
    s_mul_i32 {s(t + 11)}, {s(t + 6)}, 160
    s_add_u32 {s(t + 9)}, {s(t + 9)}, {s(t + 11)}
    s_mul_i32 {s(t + 9)}, {s(t + 9)}, 1280
    s_mul_i32 {s(t + 11)}, {s(t + 4)}, 160
    s_add_u32 {s(t + 9)}, {s(t + 9)}, {s(t + 11)}
    """)
    toks = []
    for e in range(2):
        k(f"v_add_u32 {v(o)}, {256 * e}, v0")
        if e:
            k(f"v_min_u32 {v(o)}, 319, {v(o)}")
        divc(k, q, r, o, 10, 6554, None)
        k(f"""
        v_lshrrev_b32 {v(x1)}, 3, {v(q)}
        v_mul_u32_u24 {v(x1)}, 40, {v(x1)}
        v_bfe_u32 {v(x2)}, {v(q)}, 2, 1
        v_mul_u32_u24 {v(x2)}, {s(t + 10)}, {v(x2)}
        v_and_b32 {v(q)}, 3, {v(q)}
        v_add3_u32 {v(q)}, {v(q)}, {v(x1)}, {v(x2)}
        v_mul_u32_u24 {v(q)}, 1280, {v(q)}
        v_lshl_add_u32 {v(o)}, {v(r)}, 4, {v(q)}
        s_add_u32 m0, {s(t + 3)}, {lds0 + 4096 * e}
        """)
        toks.append(k(f"buffer_load_dwordx4 {v(o)}, {srd(SWO)}, {s(t + 9)} offen lds"))
    k(f"""
    v_bfe_u32 {v(x1)}, v0, 4, 2
    v_bfe_u32 {v(x2)}, v0, 2, 2
    v_lshl_add_u32 {v(x1)}, {v(x1)}, 3, {v(x2)}
    v_mul_u32_u24 {v(x1)}, 160, {v(x1)}
    v_and_b32 {v(x2)}, 3, v0
    v_lshl_add_u32 {v(ad)}, {v(x2)}, 3, {v(x1)}
    v_add_u32 {v(ad)}, {lds0}, {v(ad)}
    s_lshl_b32 {s(t + 11)}, {s(sWAVE)}, 5
    v_add_u32 {v(adw)}, {s(t + 11)}, {v(ad)}
    s_mul_i32 {s(t + 8)}, {s(t + 8)}, 5120
    s_add_u32 {s(t + 8)}, {s(t + 8)}, {WOF}
    v_lshl_add_u32 {v(d0)}, v1, 4, {s(t + 8)}
    v_add_u32 {v(x2)}, 4096, {v(d0)}
    v_mov_b32 {v(x1)}, {OOB}
    v_cmp_gt_u32 vcc, 64, v0
    s_sub_u32 {s(t + 11)}, {s(sWAVE)}, {s(t + 6)}
    s_and_b32 {s(t + 11)}, {s(t + 11)}, 3
    s_lshl_b32 {s(t + 11)}, {s(t + 11)}, 10
    v_cndmask_b32 {v(d4)}, {v(x1)}, {v(x2)}, vcc
    v_add_u32 {v(d0)}, {s(t + 11)}, {v(d0)}
    """)
    return dict(toks=toks, ad=ad, adw=adw, d0=d0, d4=d4, fr=R.get(8, 4))


def wo_prep_finish(k, st, sc):
    fr = st["fr"]
    k(f"""
    ds_read_b64_tr_b16 {v(fr, 2)}, {v(st['adw'])}
    ds_read_b64_tr_b16 {v(fr + 2, 2)}, {v(st['adw'])} offset:{4 * 160}
    ds_read_b64_tr_b16 {v(fr + 4, 2)}, {v(st['ad'])} offset:128
    ds_read_b64_tr_b16 {v(fr + 6, 2)}, {v(st['ad'])} offset:{128 + 4 * 160}
    buffer_store_dwordx4 {v(fr, 4)}, {v(st['d0'])}, {srd(SWS)}, 0 offen {sc}
    buffer_store_dwordx4 {v(fr + 4, 4)}, {v(st['d4'])}, {srd(SWS)}, 0 offen {sc}
    """)


def zero_sa(k, R, sc=""):
    R = R.fork()
    z, o = R.get(), R.get()
    k(f"""
    v_mov_b32 {v(z)}, {OOB}
    v_lshlrev_b32 {v(o)}, 2, v0
    v_cmp_gt_u32 vcc, 64, v0
    v_cndmask_b32 {v(o)}, {v(z)}, {v(o)}, vcc
    v_mov_b32 {v(z)}, 0
    s_lshl_b32 {s(97)}, s2, 8
    s_add_u32 {s(97)}, {s(97)}, {SA}
    """)
    return k(f"buffer_store_dword {v(z)}, {v(o)}, {srd(SWS)}, {s(97)} offen {sc}")


K_PITCH = 4160


def kgen_issue(k, R, part):
    t = 96
    prm = R if isinstance(R, int) else R.get(10)
    o = vS0
    k(f"""
    s_min_u32 {s(t)}, {s(sQUAD)}, 159
    s_lshl_b32 {s(t)}, {s(t)}, 2
    s_add_u32 {s(t)}, {s(t)}, {s(sWAVE)}
    s_mul_i32 {s(t + 1)}, {s(t)}, 384
    s_lshl_b32 {s(t)}, {s(t)}, 1
    v_lshl_add_u32 {v(o)}, v1, {2 - part}, {s(t + 1)}
    v_mov_b32 {v(prm + 9)}, {s(t)}
    """)
    for j, p in enumerate((P_LA, P_AI, P_CR, P_CI)):
        if part == 0:
            k(f"global_load_dword {v(prm + j)}, {v(o)}, {s(p, 2)}")
        else:
            k(f"global_load_ushort {v(prm + 4 + j)}, {v(o)}, {s(p, 2)} offset:256")
    if part == 0:
        k(f"global_load_ushort {v(prm + 8)}, {v(prm + 9)}, {s(P_LDT, 2)}")
    else:
        k(f"global_load_ushort {v(prm + 9)}, {v(prm + 9)}, {s(P_DSK, 2)}")
    return prm


def cmul(k, d, x, y, t):
    k(f"v_pk_mul_f32 {v(t, 2)}, {v(x, 2)}, {v(y, 2)} op_sel:[0,0] op_sel_hi:[0,1]")
    k(f"v_pk_fma_f32 {v(d, 2)}, {v(x, 2)}, {v(y, 2)}, {v(t, 2)} op_sel:[1,1,0] op_sel_hi:[1,0,1] neg_lo:[0,1,0]")


def bf16_round(k, d, x):
    k(f"v_cvt_pk_bf16_f32 {v(d)}, {v(x)}, {v(x)}\n v_lshlrev_b32 {v(d)}, 16, {v(d)}")


T_ROWS = [0, 1, 2, 3, 4, 5, 6, 7, 256, 258, 260, None, 260, 262, 264, None,
          512, 516, 520, None, 768, 772, 776, None, 1024, 1032, 1280, 1288, 1536, 1544, 1792, 1800]


KG_ROW = 272
KG_WAVE = 32 * KG_ROW
sKM0 = 37


class KGen:
    def __init__(self, k, R, acc, prm, scr0, kl0, R2):
        self.k, self.prm, self.kl0 = k, prm, kl0
        R = R.fork()
        t = sT
        self.acc = acc
        self.val = R.get(8, 4)
        self.pk = [R2.get() for _ in range(10)]
        self.pend = []
        self.z = [R.get(2) for _ in range(6)]
        self.c0 = R.get(2)
        self.tmp = R.get(2)
        self.m = ra, dt, al, be, x1, x2, x3 = [R2.get() for _ in range(4)] + [199, 215, 215]
        self.npk = 0
        self.lo = min(scr0, 65536 - 3 * KG_WAVE - 16)
        self.off = scr0 - self.lo
        assert self.off + KG_WAVE < 65536
        k(f"""
        s_mul_i32 {s(sKM0)}, {s(sWAVE)}, {KG_WAVE}
        s_add_u32 {s(t)}, {s(sKM0)}, {scr0}
        s_add_u32 {s(sKM0)}, {s(sKM0)}, {self.lo}
        s_mov_b32 m0, {s(sKM0)}
        v_and_b32 {v(x1)}, 31, v1
        v_mul_u32_u24 {v(x1)}, {KG_ROW}, {v(x1)}
        v_lshrrev_b32 {v(x2)}, 5, v1
        v_lshl_add_u32 {v(x1)}, {v(x2)}, 4, {v(x1)}
        v_add_u32 {v(ra)}, {s(t)}, {v(x1)}
        v_lshlrev_b32 {v(dt)}, 16, {v(prm + 8)}
        v_mul_f32 {v(dt)}, {f2i(LOG2E)}, {v(dt)}
        v_exp_f32 {v(dt)}, {v(dt)}
        """)
        bf16_round(k, dt, dt)

    def put(self, x, rows, neg_im):
        k = self.k
        pk = self.pk[self.npk]
        self.npk += 1
        if x is None:
            k(f"v_mov_b32 {v(pk)}, 0x3f80")
        else:
            k(f"v_cvt_pk_bf16_f32 {v(pk)}, {v(x)}, {'-' if neg_im else ''}{v(x + 1)}")
        for r in rows:
            self.pend.append(f"ds_write_addtid_b32 {v(pk)} offset:{self.off + KG_ROW * r}")
        if self.npk == len(self.pk):
            self.flush()

    def flush(self):
        for w in self.pend:
            self.k(w)
        self.pend = []
        self.npk = 0

    def setup(self, c):
        k = self.k
        z1, z2, z4, z8, z16, z256 = self.z
        ra, dt, al, be, x1, x2, x3 = self.m
        la, ai, cr, ci = (self.prm + 4 * (c // 2) + j for j in range(4))
        up = (lambda d, x: f"v_and_b32 {v(d)}, 0xffff0000, {v(x)}") if c == 1 else (lambda d, x: f"v_lshlrev_b32 {v(d)}, 16, {v(x)}")
        e = [z2, z2 + 1, z4]
        f = [z4 + 1, z16, z16 + 1]
        k(f"""
        {up(x1, la)}
        v_mul_f32 {v(x1)}, {f2i(LOG2E)}, {v(x1)}
        v_exp_f32 {v(x1)}, {v(x1)}
        {up(be, ai)}
        v_mul_f32 {v(be)}, {v(be)}, {v(dt)}
        v_mul_f32 {v(be)}, {f2i(0.15915494309189535)}, {v(be)}
        """)
        bf16_round(k, x1, x1)
        k(f"""
        v_mul_f32 {v(al)}, {v(x1)}, {v(dt)}
        v_mul_f32 {v(al)}, {f2i(-LOG2E)}, {v(al)}
        v_mul_f32 {v(e[0])}, {f2i(8.0)}, {v(al)}
        v_mul_f32 {v(f[0])}, {f2i(8.0)}, {v(be)}
        v_mul_f32 {v(e[2])}, {f2i(256.0)}, {v(al)}
        v_mul_f32 {v(f[2])}, {f2i(256.0)}, {v(be)}
        v_fract_f32 {v(f[0])}, {v(f[0])}
        v_fract_f32 {v(f[1])}, {v(be)}
        v_fract_f32 {v(f[2])}, {v(f[2])}
        v_exp_f32 {v(e[0])}, {v(e[0])}
        v_exp_f32 {v(e[1])}, {v(al)}
        v_exp_f32 {v(e[2])}, {v(e[2])}
        """)
        zz = (z8, z1, z256)
        for i in range(3):
            k(f"v_cos_f32 {v(zz[i])}, {v(f[i])}\n v_sin_f32 {v(zz[i] + 1)}, {v(f[i])}")
        k(f"""
        {up(self.c0, cr)}
        {up(self.c0 + 1, ci)}
        v_add_f32 {v(x1)}, {v(dt)}, {v(dt)}
        v_mul_f32 {v(self.c0)}, {v(self.c0)}, {v(x1)}
        v_mul_f32 {v(self.c0 + 1)}, {v(self.c0 + 1)}, {v(x1)}
        """)
        for i in range(3):
            k(f"v_mul_f32 {v(zz[i])}, {v(zz[i])}, {v(e[i])}\n v_mul_f32 {v(zz[i] + 1)}, {v(zz[i] + 1)}, {v(e[i])}")

    def chains(self):
        k, val, tmp = self.k, self.val, self.tmp
        z1, z2, z4, z8, z16, z256 = self.z
        ra = self.m[0]
        self.put(None, [0], False)
        self.put(z8, [1], False)
        prev = z8
        for i in range(2, 32):
            cur = val + 2 * (i % 2)
            cmul(k, cur, prev, z8, tmp)
            self.put(cur, [i], False)
            prev = cur
        self.flush()
        if STAMPS.get("kg"):
            stamp(k, "S")
        for st_ in range(8):
            k(f"ds_read_b128 {a(160 + 4 * st_, 4)}, {v(ra)} offset:{32 * st_}")
        cmul(k, z2, z1, z1, tmp)
        cmul(k, z4, z2, z2, tmp)
        rows = lambda p: [r for r, q in enumerate(T_ROWS) if q == p]
        self.put(self.c0, rows(0), True)
        prev = self.c0
        for p in range(1, 8):
            cur = val + 2 * (p % 2)
            cmul(k, cur, prev, z1, tmp)
            self.put(cur, rows(p), True)
            prev = cur
        base = self.c0
        for n, (b, step, z, cnt) in enumerate([(256, 2, z2, 4), (512, 4, z4, 2), (768, 4, z4, 2), (1024, 8, z8, 1),
                                               (1280, 8, z8, 1), (1536, 8, z8, 1), (1792, 8, z8, 1)]):
            nb = val + 4 + 2 * (n % 2)
            cmul(k, nb, base, z256, tmp)
            self.put(nb, rows(b), True)
            base = prev = nb
            for i in range(1, cnt + 1):
                cur = val + 2 * (i % 2)
                cmul(k, cur, prev, z, tmp)
                self.put(cur, rows(b + step * i), True)
                prev = cur
        self.flush()
        if STAMPS.get("kg"):
            stamp(k, "T")
        for st_ in range(8):
            k(f"ds_read_b128 {a(192 + 4 * st_, 4)}, {v(ra)} offset:{32 * st_}")

    def mfmas(self, zero, fill, dma=()):
        k = self.k
        m = k.mark()
        for st_ in range(8):
            cin = "0" if (zero and st_ == 0) else v(self.acc, 16)
            k(f"v_mfma_f32_32x32x16_bf16 {v(self.acc, 16)}, {a(192 + 4 * st_, 4)}, {a(160 + 4 * st_, 4)}, {cin}")
        main = k.cut(m)
        fill, dma, had = list(fill), list(dma), bool(dma)
        k.put(flat(dma[:1]) + fill[:10])
        del fill[:10], dma[:1]
        for i, e in enumerate(main):
            k.put([e])
            if dma and (i % 2 == 0 or len(dma) > (8 - i) // 2):
                k.put(flat([dma.pop(0)]))
            k.put(fill[:4])
            del fill[:4]
        k.put(flat(dma) + fill)
        if had:
            k(f"s_mov_b32 m0, {s(sKM0)}")


def k_expand(k, acc, dsk, tmp, kl0):
    o, ab, a8, a16, be, x = tmp, tmp + 8, tmp + 9, tmp + 10, tmp + 11, tmp + 12
    t = sT + 8
    m = k.mark()
    k(f"""
    s_mul_i32 {s(t)}, {s(sWAVE)}, {K_PITCH}
    s_add_u32 {s(t)}, {s(t)}, {kl0}
    v_and_b32 {v(ab)}, 31, v1
    v_lshl_add_u32 {v(ab)}, {v(ab)}, 4, {s(t)}
    v_lshrrev_b32 {v(be)}, 5, v1
    v_lshl_add_u32 {v(a8)}, {v(be)}, 3, {v(ab)}
    v_lshl_add_u32 {v(a16)}, {v(be)}, 9, {v(ab)}
    v_lshl_add_u32 {v(ab)}, {v(be)}, 10, {v(ab)}
    v_cmp_eq_u32 vcc, 0, v1
    v_lshlrev_b32 {v(x)}, 16, {v(dsk)}
    v_min_u32 {v(be)}, 15, v1
    v_cndmask_b32 {v(x)}, 0, {v(x)}, vcc
    v_lshl_add_u32 {v(be)}, {v(be)}, 2, {s(t)}
    v_add_f32 {v(acc)}, {v(acc)}, {v(x)}
    v_and_b32 {v(x)}, 1, v1
    v_cmp_eq_u32 vcc, 1, {v(x)}
    v_mov_b32 {v(x)}, 0
    v_cvt_pk_bf16_f32 {v(o)}, {v(acc)}, {v(acc + 1)}
    v_cvt_pk_bf16_f32 {v(o + 1)}, {v(acc + 2)}, {v(acc + 3)}
    v_cvt_pk_bf16_f32 {v(o + 2)}, {v(acc + 4)}, {v(acc + 4)}
    v_cvt_pk_bf16_f32 {v(o + 3)}, {v(acc + 5)}, {v(acc + 6)}
    v_cvt_pk_bf16_f32 {v(o + 4)}, {v(acc + 8)}, {v(acc + 8)}
    v_cvt_pk_bf16_f32 {v(o + 5)}, {v(acc + 8)}, {v(acc + 9)}
    v_cvt_pk_bf16_f32 {v(o + 6)}, {v(acc + 9)}, {v(acc + 9)}
    v_cvt_pk_bf16_f32 {v(o + 7)}, {v(acc + 10)}, {v(acc + 10)}
    ds_write_b32 {v(be)}, {v(x)}
    ds_write_b64 {v(a8)}, {v(o, 2)} offset:64
    ds_write_b64 {v(a8)}, {v(o + 2, 2)} offset:{64 + 512}
    ds_write_b128 {v(a16)}, {v(o + 4, 4)} offset:{64 + 1024}
    """)
    for j in range(2):
        g0, g1 = acc + 12 + 2 * j, acc + 13 + 2 * j
        d = acc + 4 * j
        k(f"""
        v_cndmask_b32 {v(x + 1)}, {v(g0)}, {v(g1)}, vcc
        v_cvt_pk_bf16_f32 {v(d)}, {v(g0)}, {v(g0)}
        v_mov_b32 {v(d + 1)}, {v(d)}
        v_cvt_pk_bf16_f32 {v(d + 2)}, {v(x + 1)}, {v(g1)}
        v_cvt_pk_bf16_f32 {v(d + 3)}, {v(g1)}, {v(g1)}
        ds_write_b128 {v(ab)}, {v(d, 4)} offset:{64 + 2048 + 512 * j}
        """)
    return k.cut(m)


def k_to_global(k, R, kl0):
    R = R.fork()
    t = sT
    ad, go, g2 = R.get(), R.get(), R.get()
    d = R.get(20, 4)
    k(f"""
    s_mul_i32 {s(t)}, {s(sWAVE)}, {K_PITCH}
    s_mul_i32 {s(t + 1)}, {s(sQUAD)}, {4 * K_PITCH}
    s_add_u32 {s(t + 1)}, {s(t + 1)}, {s(t)}
    s_add_u32 {s(t + 1)}, {s(t + 1)}, {KB}
    s_add_u32 {s(t + 2)}, {s(t + 1)}, 4096
    s_add_u32 {s(t)}, {s(t)}, {kl0}
    v_lshlrev_b32 {v(go)}, 4, v1
    v_add_u32 {v(ad)}, {s(t)}, {v(go)}
    v_mov_b32 {v(g2)}, {OOB}
    v_cmp_gt_u32 vcc, 4, v1
    v_cndmask_b32 {v(g2)}, {v(g2)}, {v(go)}, vcc
    s_waitcnt lgkmcnt(0)
    """)
    for e in range(5):
        k(f"ds_read_b128 {v(d + 4 * e, 4)}, {v(ad)} offset:{1024 * e}")
    for e in range(4):
        k(f"buffer_store_dwordx4 {v(d + 4 * e, 4)}, {v(go)}, {srd(SWS)}, {s(t + 1)} offen offset:{1024 * e}")
    k(f"buffer_store_dwordx4 {v(d + 16, 4)}, {v(g2)}, {srd(SWS)}, {s(t + 2)} offen")


XH = 17408
XG = XH + 2176
XT0 = 36352
AT0 = 0
AT_END = AT0 + 4 * 6400
ZR0 = 155648
ON0 = ZR0 + 2048
CS0 = ON0 + 2048
sJ0, sXS, sXH, sWF = 98, 99, 100, 101
sM0 = 90
NEG = f2i(-1e30)


class QState:
    pass


BACKOFF = [4]


def cold(k, fn):
    m = k.mark()
    fn()
    if not hasattr(k, "cold"):
        k.cold = []
    k.cold += k.cut(m)


def retry(k, entry, reload, name, budget=sTRY, count=None, masked=True):
    redo, cont = k.lab("rd"), k.lab("rc")
    k(f"s_cbranch_vccnz {redo}\n {cont}:")

    def f():
        k(f"{redo}:\n s_cmp_eq_u32 {s(budget)}, 0\n s_cbranch_scc1 {cont}\n s_sub_u32 {s(budget)}, {s(budget)}, 1")
        if STAMPS["on"] and count is not None:
            k(f"v_readlane_b32 s40, v3, {48 + count}\n s_add_u32 s40, s40, 1\n v_writelane_b32 v3, s40, {48 + count}")
        k("s_nop 7\n s_nop 7")
        if masked:
            k(f"s_sleep {BACKOFF[0]}\n s_mov_b64 exec, vcc")
        reload()
        k(f"s_mov_b64 exec, -1\n s_waitcnt vmcnt(0) lgkmcnt(0)\n s_branch {entry}")
    cold(k, f)


def spread(main, items, every, start=0):
    out, items, n, full = [], list(items), -start, True

    def scc_live(p):
        for j in main[p:]:
            if j.mn.startswith(("s_cselect", "s_cbranch_scc", "s_addc")):
                return True
            if j.kind == "salu" and not j.mn.startswith(("s_mov", "s_mul", "s_getpc")):
                return False
        return False
    depth = set()
    for p, i in enumerate(main):
        if i.kind == "label" or i.kind == "branch":
            if i.kind == "branch" and any(j.label == i.target for j in main[p:]):
                depth.add(i.target)
            depth.discard(i.label)
            out.append(i)
            continue
        if items and full and n >= every and not depth and not scc_live(p):
            out += flat([items.pop(0)])
            n = 0
        out.append(i)
        n += 1
        if ("s", "exec") in i.defs:
            full = i.text.split(";")[0].strip() == "s_mov_b64 exec, -1"
    return out + flat(items)


def vm_items(lst):
    out, cur = [], []
    for e in lst:
        cur += flat([e])
        if any(i.kind in ("vmem", "dma") for i in flat([e])):
            out.append(cur)
            cur = []
    if cur:
        out.append(cur)
    return out


def grab(k, fn):
    m = k.mark()
    r = fn()
    return k.cut(m), r


def const_init(k, R):
    T = R.fork()
    z = T.get(4, 4)
    ad = T.get()
    k(f"""
    v_mov_b32 {v(z)}, 0
    v_mov_b32 {v(z + 1)}, 0
    v_mov_b32 {v(z + 2)}, 0x3f803f80
    v_mov_b32 {v(z + 3)}, 0x3f803f80
    v_lshlrev_b32 {v(ad)}, 3, v0
    v_add_u32 {v(ad)}, {ZR0}, {v(ad)}
    ds_write_b64 {v(ad)}, {v(z, 2)}
    ds_write_b64 {v(ad)}, {v(z + 2, 2)} offset:2048
    """)


def at_zero(k, R):
    T = R.fork()
    z = T.get(2)
    ad, x1 = T.get(), T.get()
    k(f"""
    v_mov_b32 {v(z)}, 0
    v_mov_b32 {v(z + 1)}, 0
    v_lshrrev_b32 {v(ad)}, 5, v0
    v_mul_u32_u24 {v(ad)}, 1600, {v(ad)}
    v_and_b32 {v(x1)}, 31, v0
    v_min_u32 {v(x1)}, 19, {v(x1)}
    v_lshl_add_u32 {v(ad)}, {v(x1)}, 3, {v(ad)}
    v_add_u32 {v(ad)}, {AT0 + 6400}, {v(ad)}
    ds_write_b64 {v(ad)}, {v(z, 2)}
    """)


def q_setup(k, R):
    q = QState()
    q.cs = R.get(16, 4)
    q.csh = R.get(4, 4)
    q.bc = R.get(4, 4)
    q.bp = R.get(4, 4)
    q.mc = R.get(2)
    q.wq, q.wq3, q.wh, q.a1, q.a2, q.av0, q.av1, q.om, q.orr, q.stm, q.sth, q.hinc = (R.get() for _ in range(12))
    T = R.fork()
    n, h, x1, x2, x3, x4 = (T.get() for _ in range(6))
    t = sT
    k(f"""
    v_and_b32 {v(n)}, 31, v1
    v_lshrrev_b32 {v(h)}, 5, v1
    v_mul_u32_u24 {v(x1)}, 40, {v(n)}
    v_mul_u32_u24 {v(x2)}, 3200, {v(h)}
    v_add_u32 {v(x2)}, {v(x1)}, {v(x2)}
    s_lshl_b32 {s(t)}, {s(sWAVE)}, 3
    s_add_u32 {s(t)}, {s(t)}, {AT0 + 320}
    v_add_u32 {v(q.wq)}, {s(t)}, {v(x2)}
    s_mul_i32 {s(t)}, {s(sWAVE)}, 6400
    s_add_u32 {s(t)}, {s(t)}, {AT0 + 320 + 32}
    v_add_u32 {v(q.wq3)}, {s(t)}, {v(x2)}
    s_lshl_b32 {s(t + 6)}, {s(sPAR)}, 12
    v_lshl_add_u32 {v(q.stm)}, {v(n)}, 3, {s(t + 6)}
    """)
    k(f"""
    v_bfe_u32 {v(x1)}, v1, 2, 1
    v_and_b32 {v(x2)}, 3, v1
    v_lshlrev_b32 {v(x3)}, 13, {v(x1)}
    v_lshl_add_u32 {v(x3)}, {v(x2)}, 3, {v(x3)}
    v_add_u32 {v(q.sth)}, {s(t + 6)}, {v(x3)}
    v_bfe_u32 {v(x3)}, v1, 4, 1
    v_lshl_add_u32 {v(x1)}, {v(x3)}, 1, {v(x1)}
    v_mul_u32_u24 {v(x1)}, 40, {v(x1)}
    v_add_u32 {v(x1)}, {v(x1)}, {v(x2)}
    v_mul_u32_u24 {v(x1)}, 40, {v(x1)}
    v_bfe_u32 {v(x2)}, v1, 3, 1
    v_cmp_eq_u32 {s(sC, 2)}, {v(x2)}, {v(x3)}
    v_lshl_add_u32 {v(x2)}, {v(x2)}, 1, {v(h)}
    v_cmp_eq_u32 vcc, 3, {v(x2)}
    v_mov_b32 {v(x3)}, {s(sWAVE)}
    v_cndmask_b32 {v(x2)}, {v(x2)}, {v(x3)}, vcc
    v_cndmask_b32 {v(x3)}, {v(x3)}, 4, vcc
    v_mul_u32_u24 {v(x2)}, 6400, {v(x2)}
    v_lshl_add_u32 {v(x1)}, {v(x3)}, 3, {v(x1)}
    v_add_u32 {v(x1)}, {v(x1)}, {v(x2)}
    v_add_u32 {v(q.wh)}, {AT0 + 160}, {v(x1)}
    v_mov_b32 {v(x1)}, {XG}
    v_cndmask_b32 {v(q.hinc)}, 0, {v(x1)}, {s(sHALO, 2)}
    """)
    c, g = n, h
    k(f"""
    v_and_b32 {v(c)}, 15, v1
    v_lshrrev_b32 {v(g)}, 4, v1
    s_and_b32 {s(t)}, {s(sWAVE)}, 1
    s_and_b32 {s(t + 1)}, {s(sWAVE)}, 2
    s_mul_i32 {s(t + 2)}, {s(t)}, 3200
    s_mul_i32 {s(t + 3)}, {s(t + 1)}, 320
    s_add_u32 {s(t + 2)}, {s(t + 2)}, {s(t + 3)}
    s_add_u32 {s(t + 2)}, {s(t + 2)}, {AT0}
    v_and_b32 {v(x1)}, 1, v1
    v_mul_u32_u24 {v(x1)}, 1600, {v(x1)}
    v_lshrrev_b32 {v(x2)}, 1, {v(c)}
    v_mul_u32_u24 {v(x3)}, 40, {v(x2)}
    v_add3_u32 {v(x1)}, {v(x1)}, {v(x3)}, {s(t + 2)}
    v_lshl_add_u32 {v(q.a1)}, {v(g)}, 3, {v(x1)}
    v_add_u32 {v(q.a2)}, 32, {v(x1)}
    v_bfe_u32 {v(x1)}, v1, 2, 1
    v_mul_u32_u24 {v(x1)}, 1600, {v(x1)}
    v_lshrrev_b32 {v(x3)}, 3, v1
    v_mul_u32_u24 {v(x3)}, 40, {v(x3)}
    v_add3_u32 {v(x1)}, {v(x1)}, {v(x3)}, {s(t + 2)}
    v_add_u32 {v(x1)}, 12800, {v(x1)}
    v_and_b32 {v(x3)}, 3, v1
    v_lshl_add_u32 {v(q.av0)}, {v(x3)}, 3, {v(x1)}
    v_add_u32 {v(x1)}, 32, {v(x1)}
    v_cmp_eq_u32 vcc, 0, {v(x3)}
    v_mov_b32 {v(x3)}, {ON0}
    v_cndmask_b32 {v(q.av1)}, {v(x3)}, {v(x1)}, vcc
    """)
    k(f"""
    v_and_b32 {v(x1)}, 1, {v(g)}
    v_add_u32 {v(x1)}, {s(t + 1)}, {v(x1)}
    v_lshrrev_b32 {v(x3)}, 2, {v(c)}
    v_lshl_add_u32 {v(x1)}, {v(x1)}, 2, {v(x3)}
    v_and_b32 {v(x2)}, 1, {v(x2)}
    v_lshl_add_u32 {v(x1)}, {v(x2)}, 4, {v(x1)}
    v_and_b32 {v(x2)}, 1, {v(c)}
    v_lshl_add_u32 {v(x1)}, {v(x2)}, 10, {v(x1)}
    s_lshl_b32 {s(t + 5)}, {s(sHP)}, 1
    s_add_u32 {s(t + 5)}, {s(t + 5)}, {s(t)}
    s_lshl_b32 {s(t + 4)}, {s(t + 5)}, 3
    s_add_u32 {s(t + 4)}, {s(t + 4)}, {s(sPAR)}
    s_lshl_b32 {s(t + 4)}, {s(t + 4)}, 13
    v_lshrrev_b32 {v(x2)}, 1, {v(g)}
    v_lshlrev_b32 {v(x2)}, 15, {v(x2)}
    v_lshl_add_u32 {v(x2)}, {v(x1)}, 4, {v(x2)}
    v_add_u32 {v(q.om)}, {s(t + 4)}, {v(x2)}
    s_lshl_b32 {s(t + 4)}, {s(t + 5)}, 2
    s_add_u32 {s(t + 4)}, {s(t + 4)}, {s(sPAR)}
    s_lshl_b32 {s(t + 4)}, {s(t + 4)}, 12
    s_add_u32 {s(t + 4)}, {s(t + 4)}, {OB_R}
    v_lshl_add_u32 {v(q.orr)}, {v(x1)}, 3, {s(t + 4)}
    s_or_b32 {s(t + 4)}, {s(t + 1)}, {s(sBLK)}
    s_cmp_eq_u32 {s(t + 4)}, 0
    s_cselect_b64 {s(sM0, 2)}, -1, 0
    """)
    k(f"""
    v_lshlrev_b32 {v(x1)}, 2, {v(g)}
    v_sub_u32 {v(x1)}, {v(c)}, {v(x1)}
    v_mov_b32 {v(x4)}, {NEG}
    """)
    for i in range(4):
        k(f"""
        v_subrev_u32 {v(x2)}, {i}, {v(x1)}
        v_cmp_lt_u32 vcc, 7, {v(x2)}
        v_cndmask_b32 {v(q.bc + i)}, 0, {v(x4)}, vcc
        v_cmp_lt_i32 vcc, -9, {v(x2)}
        v_cndmask_b32 {v(q.bp + i)}, 0, {v(x4)}, vcc
        v_cmp_le_i32 vcc, 0, {v(x2)}
        v_mov_b32 {v(x3)}, {'0xffff0000' if i & 1 else '0xffff'}
        v_cndmask_b32 {v(x3)}, 0, {v(x3)}, vcc
        """)
        if i & 1:
            k(f"v_or_b32 {v(q.mc + i // 2)}, {v(q.mc + i // 2)}, {v(x3)}")
        else:
            k(f"v_mov_b32 {v(q.mc + i // 2)}, {v(x3)}")
    return q


def x_addr(k, R, layer, T=None):
    x = QState()
    x.layer = layer
    x.dm = [R.get() for _ in range(4)]
    x.dh, x.rm, x.rh = R.get(), R.get(), R.get()
    T = T or R.fork()
    x1, x2, x3 = T.get(), T.get(), T.get()
    t = sT
    if layer == 0:
        k(f"""
        s_and_b32 {s(t)}, {s(sWAVE)}, 1
        s_lshl_b32 {s(t)}, {s(t)}, 6
        s_and_b32 {s(t + 1)}, {s(sWAVE)}, 2
        s_add_u32 {s(t)}, {s(t)}, {s(t + 1)}
        s_mul_i32 {s(t)}, {s(t)}, 1280
        v_lshrrev_b32 {v(x1)}, 4, v1
        v_and_b32 {v(x2)}, 15, v1
        v_xor_b32 {v(x2)}, {v(x1)}, {v(x2)}
        v_lshlrev_b32 {v(x2)}, 4, {v(x2)}
        v_mul_u32_u24 {v(x3)}, 5120, {v(x1)}
        v_add3_u32 {v(x.dm[0])}, {v(x2)}, {v(x3)}, {s(t)}
        s_and_b32 {s(t)}, {s(sWAVE)}, 1
        s_lshl_b32 {s(t)}, {s(t)}, 3
        s_add_u32 {s(t)}, {s(t)}, {s(t + 1)}
        s_mul_i32 {s(t)}, {s(t)}, 1280
        v_add3_u32 {v(x.dh)}, {v(x2)}, {v(x3)}, {s(t)}
        v_lshrrev_b32 {v(x2)}, 5, v1
        v_and_b32 {v(x1)}, 3, v1
        v_xor_b32 {v(x3)}, {v(x1)}, {v(x2)}
        v_lshlrev_b32 {v(x3)}, 4, {v(x3)}
        v_lshl_add_u32 {v(x3)}, {v(x1)}, 8, {v(x3)}
        v_bfe_u32 {v(x1)}, v1, 2, 3
        v_mul_u32_u24 {v(x1)}, 1088, {v(x1)}
        v_add_u32 {v(x.rm)}, {v(x1)}, {v(x3)}
        v_and_b32 {v(x1)}, 1, v1
        v_xor_b32 {v(x3)}, {v(x1)}, {v(x2)}
        v_lshlrev_b32 {v(x3)}, 4, {v(x3)}
        v_lshl_add_u32 {v(x3)}, {v(x1)}, 8, {v(x3)}
        v_bfe_u32 {v(x1)}, v1, 1, 2
        v_mul_u32_u24 {v(x1)}, 544, {v(x1)}
        v_add_u32 {v(x3)}, {v(x1)}, {v(x3)}
        """)
        step = 4 * 5120 - 1088
    else:
        k(f"""
        s_lshl_b32 {s(t)}, {s(sWAVE)}, 17
        v_lshrrev_b32 {v(x1)}, 5, v1
        v_lshl_add_u32 {v(x1)}, {v(x1)}, 14, {s(t)}
        v_bfe_u32 {v(x2)}, v1, 4, 1
        v_lshl_add_u32 {v(x1)}, {v(x2)}, 13, {v(x1)}
        v_and_b32 {v(x2)}, 15, v1
        v_lshl_add_u32 {v(x.dm[0])}, {v(x2)}, 4, {v(x1)}
        v_bfe_u32 {v(x1)}, v1, 2, 3
        v_lshl_add_u32 {v(x1)}, {v(x1)}, 14, {s(t)}
        v_bfe_u32 {v(x2)}, v1, 1, 1
        v_lshl_add_u32 {v(x1)}, {v(x2)}, 13, {v(x1)}
        v_and_b32 {v(x2)}, 1, v1
        v_lshl_add_u32 {v(x.dh)}, {v(x2)}, 4, {v(x1)}
        v_lshrrev_b32 {v(x2)}, 5, v1
        v_and_b32 {v(x1)}, 31, v1
        v_lshlrev_b32 {v(x1)}, 3, {v(x1)}
        v_lshl_add_u32 {v(x.rm)}, {v(x2)}, 10, {v(x1)}
        v_and_b32 {v(x1)}, 7, v1
        v_lshlrev_b32 {v(x1)}, 3, {v(x1)}
        v_lshl_add_u32 {v(x3)}, {v(x2)}, 7, {v(x1)}
        """)
        step = 32768 - 1024
    for d in range(1, 4):
        k(f"v_add_u32 {v(x.dm[d])}, {step * d}, {v(x.dm[0])}")
    k(f"""
    v_add_u32 {v(x3)}, {XT0 + XH}, {v(x3)}
    v_and_b32 {v(x1)}, 31, v1
    v_cmp_eq_u32 vcc, 0, {v(x1)}
    v_cmp_eq_u32 {s(sC, 2)}, 24, {v(x1)}
    s_or_b64 vcc, vcc, {s(sC, 2)}
    v_mov_b32 {v(x1)}, {ZR0}
    v_mov_b32 {v(x2)}, {ON0}
    v_cndmask_b32 {v(x1)}, {v(x1)}, {v(x2)}, vcc
    v_cndmask_b32 {v(x.rh)}, {v(x1)}, {v(x3)}, {s(sHALO, 2)}
    """)
    return x


def x_bases(k, x, chunk):
    t = sT
    k(f"""
    s_lshl_b32 {s(t)}, {s(sBLK)}, 5
    s_add_u32 {s(t)}, {s(t)}, {256 * chunk}
    s_sub_u32 {s(t + 1)}, {s(t)}, 4
    s_max_i32 {s(t + 1)}, {s(t + 1)}, 0
    """)
    if x.layer == 0:
        k(f"""
        s_mul_i32 {s(t + 2)}, {s(sPAR)}, 1280
        s_mul_i32 {s(sXS)}, {s(t)}, 5120
        s_mul_i32 {s(sXH)}, {s(t + 1)}, 5120
        s_mul_i32 {s(92)}, {s(sWAVE)}, 4352
        s_mul_i32 {s(93)}, {s(sWAVE)}, 544
        """)
    else:
        k(f"""
        s_lshl_b32 {s(t + 2)}, {s(sPAR)}, 12
        s_add_u32 {s(t + 2)}, {s(t + 2)}, {X2}
        s_lshl_b32 {s(sXS)}, {s(t)}, 3
        s_lshl_b32 {s(sXH)}, {s(t + 1)}, 3
        s_lshl_b32 {s(92)}, {s(sWAVE)}, 12
        s_lshl_b32 {s(93)}, {s(sWAVE)}, 9
        """)
    k(f"s_add_u32 {s(sXS)}, {s(sXS)}, {s(t + 2)}\n s_add_u32 {s(sXH)}, {s(sXH)}, {s(t + 2)}")


def x_dma_items(k, x, G, sc="", restore=None, own_m0=False):
    rs = srd(SX) if x.layer == 0 else srd(SWS)
    step = 256 if x.layer == 0 else 32 * 16384
    pitch = 1088 if x.layer == 0 else 1024
    items = []
    m = k.mark()
    for d in range(4):
        if d == 0 or (restore and d == 2) or own_m0:
            k(f"s_add_u32 m0, s92, {XT0 + G * XG}")
        k(f"buffer_load_dwordx4 {v(x.dm[d])}, {rs}, {s(sXS)} offen offset:{pitch * d} {sc} lds")
        if restore and d % 2 == 0:
            continue
        if restore:
            k(f"s_mov_b32 m0, {s(restore)}")
        items.append(k.cut(m))
    k(f"s_add_u32 m0, s93, {XT0 + G * XG + XH}\n s_add_u32 {s(sXS)}, {s(sXS)}, {step}")
    k(f"s_mov_b64 exec, {s(sLO32, 2)}")
    tok = k(f"buffer_load_dwordx4 {v(x.dh)}, {rs}, {s(sXH)} offen {sc} lds")
    k(f"s_mov_b64 exec, -1\n s_add_u32 {s(sXH)}, {s(sXH)}, {step}")
    if restore:
        k(f"s_mov_b32 m0, {s(restore)}")
    items.append(k.cut(m))
    return items, tok


def flat(items):
    out = []
    for e in items:
        out += e if isinstance(e, list) else [e]
    return out


def x_dma(k, x, G, sc=""):
    items, tok = x_dma_items(k, x, G, sc)
    k.put(flat(items))
    return tok


def w_addr(k, R):
    wa = R.get()
    T = R.fork()
    x1, x2 = T.get(), T.get()
    t = sT
    k(f"""
    v_bfe_u32 {v(x1)}, v1, 3, 2
    v_and_b32 {v(x2)}, {s(sWAVE)}, {v(x1)}
    v_cmp_eq_u32 vcc, 3, {v(x2)}
    v_lshrrev_b32 {v(x2)}, 5, v1
    v_lshl_add_u32 {v(x1)}, {v(x1)}, 1, {v(x2)}
    v_and_b32 {v(x2)}, 7, v1
    v_lshl_add_u32 {v(x1)}, {v(x1)}, 3, {v(x2)}
    v_lshlrev_b32 {v(wa)}, 4, {v(x1)}
    v_mov_b32 {v(x1)}, {OOB}
    v_cndmask_b32 {v(wa)}, {v(wa)}, {v(x1)}, vcc
    s_lshl_b32 {s(sWF)}, {s(sHP)}, 2
    s_add_u32 {s(sWF)}, {s(sWF)}, {s(sWAVE)}
    s_mul_i32 {s(sWF)}, {s(sWF)}, {40 * 1024}
    s_add_u32 {s(sWF)}, {s(sWF)}, {WF}
    """)
    return wa


def w_load(k, wa, lo, hi, sc=""):
    for ks in range(lo, hi):
        j = ks
        k(f"buffer_load_dwordx4 {a(4 * ks, 4)}, {v(wa)}, {srd(SWS)}, {s(sWF)} offen offset:{1024 * (j % 4)} {sc}")
        if j % 4 == 3:
            k(f"s_add_u32 {s(sWF)}, {s(sWF)}, 4096")


def q_stats_load(k, q, st, layer, chunk, sc=""):
    t = 94
    k(f"""
    s_lshl_b32 {s(sJ0)}, {s(sBLK)}, 5
    s_add_u32 {s(sJ0)}, {s(sJ0)}, {256 * chunk}
    s_sub_u32 {s(t + 1)}, {s(sJ0)}, 4
    s_max_i32 {s(t + 1)}, {s(t + 1)}, 0
    s_lshl_b32 {s(t)}, {s(sJ0)}, 3
    s_lshl_b32 {s(t + 1)}, {s(t + 1)}, 3
    s_add_u32 {s(t)}, {s(t)}, {ST + layer * ST_SZ}
    s_add_u32 {s(t + 1)}, {s(t + 1)}, {ST + layer * ST_SZ}
    s_add_u32 {s(t + 2)}, {s(t)}, 8192
    buffer_load_dwordx2 {v(st, 2)}, {v(q.stm)}, {srd(SWS)}, {s(t)} offen {sc}
    buffer_load_dwordx2 {v(st + 2, 2)}, {v(q.stm)}, {srd(SWS)}, {s(t + 2)} offen {sc}
    """)
    q.st_tok = (k(f"buffer_load_dwordx2 {v(st + 4, 2)}, {v(q.sth)}, {srd(SWS)}, {s(t + 1)} offen {sc}"), layer, chunk)


def cost(e):
    c = 0
    for i in (e if isinstance(e, list) else [e]):
        c += 0 if i.kind in ("label", "pseudo") else (3 if i.kind in ("vmem", "dma") else 1)
    return c


def q_regs(R):
    g = QState()
    g.acc = R.get(32, 4)
    g.acch = R.get(4, 4)
    g.pre = R.get(36, 4)
    g.st = R.get(6)
    g.fr = R.get(36, 4)
    g.ma = [R.get(), R.get()]
    g.ha = R.get()
    return g


def q_colsum(k, q, g):
    x1, x2 = g.pre + 16, g.pre + 17
    t = sT + 6
    items = []
    m = k.mark()
    k(f"""
    s_lshl_b32 {s(t)}, {s(sWAVE)}, 7
    s_add_u32 {s(t)}, {s(t)}, {CS0}
    v_bfe_u32 {v(x1)}, v1, 3, 1
    v_lshrrev_b32 {v(x2)}, 4, v1
    v_lshl_add_u32 {v(x1)}, {v(x1)}, 2, {v(x2)}
    v_lshl_add_u32 {v(x1)}, {v(x1)}, 4, {s(t)}
    v_lshrrev_b32 {v(x2)}, 5, v1
    v_lshl_add_u32 {v(x2)}, {v(x2)}, 4, {s(t)}
    """)
    early = k.cut(m)
    k(f"""
    s_mov_b32 exec_lo, 0x01010101
    s_mov_b32 exec_hi, 0x01010101
    ds_write_b128 {v(x1)}, {v(g.acch, 4)}
    s_mov_b64 exec, -1
    """)
    items.append(k.cut(m))
    k(f"ds_read_b128 {v(q.csh, 4)}, {v(x1)}")
    for gm in range(4):
        k(f"ds_read_b128 {v(q.cs + 4 * gm, 4)}, {v(x2)} offset:{32 * gm}")
    return early, items + k.cut(m)


def q_pre(k, q, g, part):
    if part == 0:
        for i in range(4):
            k(f"v_mul_f32 {v(g.pre + 32 + i)}, {v(q.csh + i)}, {v(g.st + 5)}")
    for i in range(16):
        k(f"v_mul_f32 {v(g.pre + 16 * part + i)}, {v(q.cs + i)}, {v(g.st + 2 * part + 1)}")


def q_emit(k, q, g, part, packed):
    def quad(r, p, stp, ad, off):
        d = r
        if packed:
            for j in (0, 2):
                k(f"v_pk_fma_f32 {v(r + j, 2)}, {v(r + j, 2)}, {v(stp, 2)}, {v(p + j, 2)} op_sel_hi:[1,0,1]")
        else:
            for j in range(4):
                k(f"v_fma_f32 {v(r + j)}, {v(r + j)}, {v(stp)}, {v(p + j)}")
        k(f"v_cvt_pk_bf16_f32 {v(d)}, {v(r)}, {v(r + 1)}\n v_cvt_pk_bf16_f32 {v(d + 1)}, {v(r + 2)}, {v(r + 3)}")
        wr.append(f"ds_write_b64 {v(ad)}, {v(d, 2)} offset:{off}")
        if len(wr) == 2:
            k("\n".join(wr))
            wr.clear()
    wr = []
    if part == 0:
        quad(g.acch, g.pre + 32, g.st + 4, q.wh, 0)
    for gm in range(4):
        quad(g.acc + 16 * part + 4 * gm, g.pre + 16 * part + 4 * gm, g.st + 2 * part,
             q.wq if gm < 3 else q.wq3, (6400 * gm if gm < 3 else 0) + 1600 * part)
    if wr:
        k("\n".join(wr))


def q_gemm(k, q, x, g, gtok, first=False, pre={}, side={}, bars=(0, 1, 2, 3), vote=False, alu={}):
    bundles = [[("h", s_), ("0", s_), ("1", s_)] for s_ in range(32)]
    bundles += [[("h", s_), ("0", s_)] for s_ in range(32, 40)]
    bundles += [[("1", s_), ("1", s_ + 1)] for s_ in range(32, 40, 2)]
    buf, nb = {}, 0
    for b in bundles:
        for op in b:
            buf[op] = g.fr + 4 * (nb % 9)
            nb += 1

    def reads(b):
        m = k.mark()
        tok = None
        for kind, ks in bundles[b]:
            j = ks % 8
            f = buf[(kind, ks)]
            if x.layer == 0:
                if kind == "h":
                    tok = k(f"ds_read_b128 {v(f, 4)}, {v(g.ha)} offset:{32 * j}")
                else:
                    tok = k(f"ds_read_b128 {v(f, 4)}, {v(g.ma[j & 1])} offset:{8704 * int(kind) + 64 * (j >> 1)}")
            else:
                for d in range(2):
                    if kind == "h":
                        tok = k(f"ds_read_b64 {v(f + 2 * d, 2)}, {v(g.ha)} offset:{256 * j + 64 * d}")
                    else:
                        tok = k(f"ds_read_b64 {v(f + 2 * d, 2)}, {v(g.ma[0])} offset:{2048 * j + 512 * d + 256 * int(kind)}")
        return k.cut(m), tok

    k(f"v_add_u32 {v(g.ma[0])}, {XT0}, {v(x.rm)}\n v_mov_b32 {v(g.ha)}, {v(x.rh)}")
    if x.layer == 0:
        k(f"v_xor_b32 {v(g.ma[1])}, 32, {v(g.ma[0])}")
    if -1 in pre:
        pre[-1]()
    STAMPS["gcnt"] = gid = STAMPS.get("gcnt", -1) + 1
    if STAMPS.get("gst") == gid:
        stamp(k, "pS", True)
    k.wait(gtok[0])
    k("s_barrier")
    if STAMPS.get("gst") == gid:
        stamp(k, "bS", True)
    if "first" in pre:
        pre["first"]()
    rtok = {}
    for b in range(2):
        lst, rtok[b] = reads(b)
        k.put(lst)
    if first:
        early, cs_items = q_colsum(k, q, g)
        tail = cs_items + grab(k, lambda: (q_pre(k, q, g, 0), q_emit(k, q, g, 0, False), q_pre(k, q, g, 1)))[0]
        late = {30: early, 40: tail}
    else:
        late = {30: grab(k, lambda: (q_pre(k, q, g, 0), q_pre(k, q, g, 1)))[0],
                40: grab(k, lambda: q_emit(k, q, g, 0, False))[0]}
    qa, qv, hold = [], [], 0
    for b, ops in enumerate(bundles):
        G, j = divmod(b, 8)
        if b < 40 and j == 6:
            if G in bars:
                if G in pre:
                    pre[G]()
                if STAMPS.get("gst") == gid:
                    stamp(k, f"p{G}", True)
                if G < 4:
                    k.wait(gtok[G + 1])
                k("s_barrier")
                if STAMPS.get("gst") == gid:
                    stamp(k, f"b{G}", True)
        if b in side:
            qv += vm_items(side[b]())
        if b in alu:
            qa += alu[b]()
        if b in late:
            if b == (40 if first else 30):
                k.order(q.st_tok[0])
            if b == 40:
                k.put(flat(qa))
                qa = []
            qa += late[b]
        rd = []
        if b < 32 and j == 6:
            m = k.mark()
            k(f"v_add_u32 {v(g.ha)}, {v(q.hinc)}, {v(g.ha)}\n v_add_u32 {v(g.ma[0])}, {XG}, {v(g.ma[0])}")
            if x.layer == 0:
                k(f"v_add_u32 {v(g.ma[1])}, {XG}, {v(g.ma[1])}")
            rd += k.cut(m)
        if b + 2 < len(bundles):
            lst, rtok[b + 2] = reads(b + 2)
            rd += lst
        k.wait(rtok[b])
        hold = max(hold - sum(16 if o_[0] == "h" else 32 for o_ in ops), -16)
        for i, (kind, ks) in enumerate(ops):
            if kind == "h":
                d, mn, cap = v(g.acch, 4), "16x16x32", 1
            else:
                d, mn, cap = v(g.acc + 16 * int(kind), 16), "32x32x16", 5
            k(f"v_mfma_f32_{mn}_bf16 {d}, {a(4 * ks, 4)}, {v(buf[(kind, ks)], 4)}, {'0' if ks == 0 else d}")
            if i == len(ops) - 1:
                take = len(rd)
                cap -= 1
            elif kind == "h":
                take = min(len(rd), 1)
            else:
                take = (len(rd) + 1) // 2
            k.put(rd[:take])
            del rd[:take]
            cap -= take
            if i == len(ops) - 1 and qv and hold <= 0:
                e = qv.pop(0)
                k.put(e)
                cap -= len(e)
                hold += 70 * sum(i_.kind in ("vmem", "dma") for i_ in e)
            if b >= 30 and kind != "h":
                cap = max(cap, 2)
            if b == 40 and i == 0:
                continue
            while qa and cap > 0:
                e = qa.pop(0)
                cap -= cost(e)
                k.put(flat([e]))
    if STAMPS.get("gst") == gid:
        stamp(k, "mf", True)
    k.put(flat(qa))
    q_emit(k, q, g, 1, True)
    if vote:
        k(f"""
        v_cmp_u_f32 vcc, {v(g.acc + 2)}, {v(g.acch + 2)}
        v_cmp_u_f32 {s(sC, 2)}, {v(g.acc + 18)}, {v(g.acc + 18)}
        s_lshl_b32 {s(sT)}, {s(sWAVE)}, 2
        s_add_u32 {s(sT)}, {s(sT)}, {CS0 + 512}
        s_or_b64 vcc, vcc, {s(sC, 2)}
        s_cselect_b32 {s(sT + 1)}, 1, 0
        v_mov_b32 {v(g.ma[0])}, {s(sT)}
        v_mov_b32 {v(g.ma[1])}, {s(sT + 1)}
        ds_write_b32 {v(g.ma[0])}, {v(g.ma[1])}
        """)
    k("s_waitcnt lgkmcnt(0)")
    k("s_barrier")
    return qv


def wd_setup(k, R, kl0):
    w = QState()
    w.base = [kl0, XT0, XT0 + XG]
    w.dm = [R.get() for _ in range(4)]
    w.ra = [R.get() for _ in range(3)]
    x1, x2, x3 = w.ra
    t = sT
    k(f"""
    s_mul_i32 {s(t)}, {s(sWAVE)}, {16 * 3840}
    s_mul_i32 {s(t + 1)}, {s(sHP)}, 80
    s_add_u32 {s(t)}, {s(t)}, {s(t + 1)}
    v_lshrrev_b32 {v(x1)}, 4, v1
    v_sub_u32 {v(x2)}, v1, {v(x1)}
    v_and_b32 {v(x2)}, 15, {v(x2)}
    v_cmp_eq_u32 vcc, 15, {v(x2)}
    v_mul_u32_u24 {v(x3)}, 13108, {v(x2)}
    v_lshrrev_b32 {v(x3)}, 16, {v(x3)}
    v_mul_u32_u24 {v(x3)}, {1280 - 80}, {v(x3)}
    v_lshl_add_u32 {v(x2)}, {v(x2)}, 4, {v(x3)}
    v_mul_u32_u24 {v(x1)}, 3840, {v(x1)}
    v_add3_u32 {v(x1)}, {v(x1)}, {v(x2)}, {s(t)}
    v_mov_b32 {v(x2)}, {OOB}
    v_cndmask_b32 {v(w.dm[0])}, {v(x1)}, {v(x2)}, vcc
    s_mov_b32 {s(sWF)}, 0
    s_lshl_b32 s43, {s(sWAVE)}, 12
    """)
    for d in range(1, 4):
        k(f"v_add_u32 {v(w.dm[d])}, {d * (4 * 3840 - 1024)}, {v(w.dm[0])}")
    k(f"""
    s_lshl_b32 {s(t)}, {s(sWAVE)}, 3
    s_mul_i32 {s(t + 1)}, {s(sWAVE)}, 80
    s_add_u32 {s(t + 1)}, {s(t + 1)}, 32
    v_bfe_u32 {v(x1)}, v1, 4, 1
    v_bfe_u32 {v(x2)}, v1, 1, 1
    v_lshl_add_u32 {v(x1)}, {v(x1)}, 1, {v(x2)}
    v_cmp_eq_u32 vcc, 3, {v(x1)}
    v_mul_u32_u24 {v(x1)}, 80, {v(x1)}
    v_add_u32 {v(x1)}, {s(t)}, {v(x1)}
    v_mov_b32 {v(x2)}, {s(t + 1)}
    v_cndmask_b32 {v(x1)}, {v(x1)}, {v(x2)}, vcc
    v_and_b32 {v(x2)}, 1, v1
    v_mul_u32_u24 {v(x2)}, 40, {v(x2)}
    v_add_u32 {v(x1)}, {v(x1)}, {v(x2)}
    v_min_u32 {v(x1)}, 240, {v(x1)}
    v_bfe_u32 {v(x2)}, v1, 2, 2
    v_lshl_add_u32 {v(x1)}, {v(x2)}, 4, {v(x1)}
    v_and_b32 {v(x1)}, 255, {v(x1)}
    v_lshrrev_b32 {v(x3)}, 5, v1
    v_lshl_add_u32 {v(x2)}, {v(x3)}, 3, {v(x2)}
    v_lshl_add_u32 {v(x1)}, {v(x2)}, 8, {v(x1)}
    v_add_u32 {v(w.ra[2])}, {w.base[2]}, {v(x1)}
    v_add_u32 {v(w.ra[1])}, {w.base[1]}, {v(x1)}
    v_add_u32 {v(w.ra[0])}, {w.base[0]}, {v(x1)}
    """)
    return w


def wd_dma(k, w, j):
    k(f"s_add_u32 m0, s43, {w.base[j % 3]}")
    for d in range(4):
        tok = k(f"buffer_load_dwordx4 {v(w.dm[d])}, {srd(SW)}, {s(sWF)} offen offset:{1024 * d} lds")
    k(f"s_add_u32 {s(sWF)}, {s(sWF)}, {64 * 3840}")
    return tok


def q_gemm_first(k, q, x, g, w, fr, wt, xt, pre, post, vm, chunk):
    k(f"""
    v_add_u32 {v(g.ma[0])}, {XT0 + 2 * XG}, {v(x.rm)}
    v_lshl_add_u32 {v(g.ha)}, {v(q.hinc)}, 1, {v(x.rh)}
    v_xor_b32 {v(g.ma[1])}, 32, {v(g.ma[0])}
    """)
    for j in range(10):
        if j in (2, 4, 6, 8):
            n = -2 if j == 6 else 1
            k(f"""
            v_mad_i32_i24 {v(g.ha)}, {v(q.hinc)}, {n}, {v(g.ha)}
            v_add_u32 {v(g.ma[0])}, {n * XG}, {v(g.ma[0])}
            v_add_u32 {v(g.ma[1])}, {n * XG}, {v(g.ma[1])}
            """)
        if j in pre:
            pre[j]()
        if STAMPS.get("r") and j in (0, 3, 5):
            stamp(k, f"p{j}")
        k.wait(wt[j], xt[j // 2])
        k("s_barrier")
        if STAMPS.get("r") and j in (0, 3, 5):
            stamp(k, f"b{j}")
        for i in range(4):
            ks = 4 * j + i
            jj = ks % 8
            for e in range(2):
                k(f"ds_read_b64_tr_b16 {a(4 * ks + 2 * e, 2)}, {v(w.ra[j % 3])} offset:{4096 * i + 1024 * e}")
            for e in range(2):
                k(f"ds_read_b128 {v(fr[i] + 4 + 4 * e, 4)}, {v(g.ma[jj & 1])} offset:{8704 * e + 64 * (jj >> 1)}")
            k(f"ds_read_b128 {v(fr[i], 4)}, {v(g.ha)} offset:{32 * jj}")
            if i == 2:
                if j + 2 < 10:
                    wt[j + 2] = wd_dma(k, w, j + 2)
                if j in post:
                    post[j]()
        if STAMPS.get("r") and j in (3,):
            stamp(k, f"r{j}")
        items = vm_items(vm[j]()) if j in vm else []
        for i in range(4):
            ks = 4 * j + i
            k(f"v_mfma_f32_16x16x32_bf16 {v(g.acch, 4)}, {a(4 * ks, 4)}, {v(fr[i], 4)}, {'0' if ks == 0 else v(g.acch, 4)}")
            for e in range(2):
                d = v(g.acc + 16 * e, 16)
                k(f"v_mfma_f32_32x32x16_bf16 {d}, {a(4 * ks, 4)}, {v(fr[i] + 4 + 4 * e, 4)}, {'0' if ks == 0 else d}")
                if items:
                    k.put(items.pop(0))
        k.put(flat(items))
        if STAMPS.get("r") and j in (3,):
            stamp(k, f"m{j}")
        k.put(flat(chunk.get(j, [])))
        if STAMPS.get("r") and j in (3,):
            stamp(k, f"k{j}")


def q_first_tail(k, q, g):
    early, cs = q_colsum(k, q, g)
    k.put(early + flat(cs))
    k.order(q.st_tok[0])
    for part in range(2):
        q_pre(k, q, g, part)
        q_emit(k, q, g, part, True)
    k("s_waitcnt lgkmcnt(0)\n s_barrier")


def q_attn(k, q, R, layer, chunk, sc="", redo=None):
    T = R.fork()
    kf = T.get(12, 4)
    qf = T.get(8, 4)
    v0_ = T.get(6)
    v1_ = T.get(6)
    S = T.get(16, 4)
    P = T.get(8, 4)
    O0 = T.get(8, 4)
    O1 = T.get(8, 4)
    bA = T.get(4, 4)
    m = T.get(2)
    l = T.get(4)
    t = sT
    c = 20 ** -0.5 * LOG2E
    if redo:
        k(f"v_mov_b32 {v(l)}, {CS0 + 512}\n ds_read_b128 {v(P, 4)}, {v(l)}")
    for u in range(2):
        k(f"v_mov_b32 {v(qf + 4 * u + 2)}, 0\n v_mov_b32 {v(qf + 4 * u + 3)}, 0")
    k("s_mov_b64 exec, 0xffff")
    for u in range(2):
        k(f"ds_read_b64 {v(qf + 4 * u + 2, 2)}, {v(q.a2)} offset:{320 + 320 * u}")
    k("s_mov_b64 exec, -1")
    for u in range(2):
        k(f"ds_read_b64 {v(qf + 4 * u, 2)}, {v(q.a1)} offset:{320 + 320 * u}")
    for j in (1, 0, 2):
        k(f"ds_read_b64 {v(kf + 4 * j, 2)}, {v(q.a1)} offset:{6400 + 320 * j}")
        k(f"ds_read_b64 {v(kf + 4 * j + 2, 2)}, {v(q.a2)} offset:{6400 + 320 * j}")
    for j in range(3):
        k(f"ds_read_b64_tr_b16 {v(v1_ + 2 * j, 2)}, {v(q.av1)} offset:{320 * j}")
        k(f"ds_read_b64_tr_b16 {v(v0_ + 2 * j, 2)}, {v(q.av0)} offset:{320 * j}")
    bpA = q.bp
    if chunk == 0:
        bpA = bA
        k(f"v_mov_b32 {v(m)}, {NEG}")
        for i in range(4):
            k(f"v_cndmask_b32 {v(bA + i)}, {v(q.bp + i)}, {v(m)}, {s(sM0, 2)}")
    k(f"""
    s_mov_b32 {s(sC)}, {f2i(c)}
    s_lshl_b32 {s(t)}, {s(sJ0)}, 4
    s_add_u32 {s(t)}, {s(t)}, {OBL[layer]}
    s_lshl_b32 {s(t + 1)}, {s(sJ0)}, 3
    s_add_u32 {s(t + 1)}, {s(t + 1)}, {OBL[layer]}
    """)
    if redo:
        k(f"v_or3_b32 {v(P)}, {v(P)}, {v(P + 1)}, {v(P + 2)}\n v_or_b32 {v(P)}, {v(P)}, {v(P + 3)}\n v_cmp_ne_u32 vcc, 0, {v(P)}")
        redo()
    k(f"""
    v_mfma_f32_16x16x32_bf16 {v(S + 4, 4)}, {v(kf + 4, 4)}, {v(qf, 4)}, {v(q.bc, 4)}
    v_mfma_f32_16x16x32_bf16 {v(S + 8, 4)}, {v(kf + 4, 4)}, {v(qf + 4, 4)}, {v(q.bp, 4)}
    v_mfma_f32_16x16x32_bf16 {v(S, 4)}, {v(kf, 4)}, {v(qf, 4)}, {v(bpA, 4)}
    v_mfma_f32_16x16x32_bf16 {v(S + 12, 4)}, {v(kf + 8, 4)}, {v(qf + 4, 4)}, {v(q.bc, 4)}
    """)
    for u in range(2):
        for i in range(4):
            k(f"v_max_f32 {v(S + 8 * u + i)}, {v(S + 8 * u + i)}, {v(S + 8 * u + 4 + i)}")
        k(f"v_max3_f32 {v(m + u)}, {v(S + 8 * u)}, {v(S + 8 * u + 1)}, {v(S + 8 * u + 2)}")
        k(f"v_max_f32 {v(m + u)}, {v(m + u)}, {v(S + 8 * u + 3)}")
    k(f"""
    v_permlane16_swap_b32 {v(m)}, {v(m + 1)}
    v_max_f32 {v(m)}, {v(m)}, {v(m + 1)}
    v_mov_b32 {v(m + 1)}, {v(m)}
    v_permlane32_swap_b32 {v(m)}, {v(m + 1)}
    v_max_f32 {v(m)}, {v(m)}, {v(m + 1)}
    v_mul_f32 {v(m)}, {s(sC)}, {v(m)}
    v_mov_b32 {v(m + 1)}, {v(m)}
    v_permlane16_swap_b32 {v(m)}, {v(m + 1)}
    """)
    for u in range(2):
        for i in range(4):
            k(f"v_fma_f32 {v(S + 8 * u + i)}, {v(S + 8 * u + i)}, {s(sC)}, -{v(m + u)}")
        for i in range(4):
            k(f"v_exp_f32 {v(S + 8 * u + i)}, {v(S + 8 * u + i)}")
        for i in range(2):
            k(f"v_cvt_pk_bf16_f32 {v(S + 8 * u + 4 + i)}, {v(S + 8 * u + 2 * i)}, {v(S + 8 * u + 2 * i + 1)}")
        for i in range(2):
            k(f"v_bfi_b32 {v(P + 4 * u + i)}, {v(q.mc + i)}, 0, {v(S + 8 * u + 4 + i)}")
            k(f"v_and_b32 {v(P + 4 * u + 2 + i)}, {v(q.mc + i)}, {v(S + 8 * u + 4 + i)}")
        k(f"v_mfma_f32_16x16x32_bf16 {v(O1 + 4 * u, 4)}, {v(v1_ + 2 * u, 4)}, {v(P + 4 * u, 4)}, 0")
        k(f"v_mfma_f32_16x16x32_bf16 {v(O0 + 4 * u, 4)}, {v(v0_ + 2 * u, 4)}, {v(P + 4 * u, 4)}, 0")
    for u in range(2):
        k(f"v_mov_b32 {v(l + 2 * u)}, {v(O1 + 4 * u)}")
        k(f"v_permlane16_swap_b32 {v(O1 + 4 * u)}, {v(l + 2 * u)}")
        k(f"v_rcp_f32 {v(l + 2 * u)}, {v(l + 2 * u)}")
        for O in (O0, O1):
            for j in (0, 2):
                k(f"v_pk_mul_f32 {v(O + 4 * u + j, 2)}, {v(O + 4 * u + j, 2)}, {v(l + 2 * u, 2)} op_sel_hi:[1,0]")
        for i in range(2):
            k(f"v_cvt_pk_bf16_f32 {v(S + 2 * u + i)}, {v(O0 + 4 * u + 2 * i)}, {v(O0 + 4 * u + 2 * i + 1)}")
            k(f"v_cvt_pk_bf16_f32 {v(S + 4 + 2 * u + i)}, {v(O1 + 4 * u + 2 * i)}, {v(O1 + 4 * u + 2 * i + 1)}")
    k(f"""
    v_permlane16_swap_b32 {v(S)}, {v(S + 2)}
    v_permlane16_swap_b32 {v(S + 1)}, {v(S + 3)}
    v_permlane16_swap_b32 {v(S + 4)}, {v(S + 6)}
    v_permlane16_swap_b32 {v(S + 5)}, {v(S + 7)}
    buffer_store_dwordx4 {v(S, 4)}, {v(q.om)}, {srd(SWS)}, {s(t)} offen {sc}
    s_mov_b64 exec, {s(sLO32, 2)}
    """)
    tok = k(f"buffer_store_dwordx2 {v(S + 4, 2)}, {v(q.orr)}, {srd(SWS)}, {s(t + 1)} offen {sc}")
    k("s_mov_b64 exec, -1")
    return tok


RB0 = 0


def o_setup(k, R):
    o = QState()
    o.wl = R.get(4, 4)
    o.lm, o.lr, o.rb, o.xo, o.x0, o.sa = (R.get() for _ in range(6))
    T = R.fork()
    n, g, x1 = T.get(), T.get(), T.get()
    t = sT
    k(f"""
    v_and_b32 {v(n)}, 15, v1
    v_lshrrev_b32 {v(g)}, 4, v1
    s_and_b32 {s(t)}, {s(sOG)}, 3
    s_lshr_b32 {s(t + 1)}, {s(sOG)}, 2
    s_lshl_b32 {s(t + 2)}, {s(sWAVE)}, 6
    s_add_u32 {s(t + 2)}, {s(t + 2)}, {s(t)}
    s_lshl_b32 {s(t + 2)}, {s(t + 2)}, 13
    s_lshl_b32 {s(t + 3)}, {s(t + 1)}, 9
    s_add_u32 {s(t + 2)}, {s(t + 2)}, {s(t + 3)}
    v_lshl_add_u32 {v(x1)}, {v(g)}, 17, {s(t + 2)}
    v_lshl_add_u32 {v(o.lm)}, {v(n)}, 4, {v(x1)}
    s_lshl_b32 {s(t + 2)}, {s(sWAVE)}, 5
    s_add_u32 {s(t + 2)}, {s(t + 2)}, {s(t)}
    s_lshl_b32 {s(t + 2)}, {s(t + 2)}, 12
    s_lshl_b32 {s(t + 3)}, {s(t + 1)}, 8
    s_add_u32 {s(t + 2)}, {s(t + 2)}, {s(t + 3)}
    s_add_u32 {s(t + 2)}, {s(t + 2)}, {OB_R}
    v_lshl_add_u32 {v(x1)}, {v(g)}, 15, {s(t + 2)}
    v_lshl_add_u32 {v(o.lr)}, {v(n)}, 3, {v(x1)}
    v_lshlrev_b32 {v(o.rb)}, 4, v1
    s_lshl_b32 {s(t + 4)}, {s(t)}, 12
    s_add_u32 {s(t + 4)}, {s(t + 4)}, {s(t + 3)}
    v_lshl_add_u32 {v(x1)}, {v(n)}, 4, {s(t + 4)}
    v_lshl_add_u32 {v(o.sa)}, {v(g)}, 2, {v(x1)}
    s_mul_i32 {s(t + 5)}, {s(sCB)}, 20
    s_lshl_b32 {s(t + 6)}, {s(sWAVE)}, 2
    s_add_u32 {s(t + 5)}, {s(t + 5)}, {s(t + 6)}
    s_lshl_b32 {s(t + 6)}, {s(t + 5)}, 14
    v_lshl_add_u32 {v(x1)}, {v(g)}, 14, {v(x1)}
    v_add_u32 {v(o.xo)}, {s(t + 6)}, {v(x1)}
    s_lshl_b32 {s(t + 6)}, {s(t + 1)}, 7
    s_add_u32 {s(t + 6)}, {s(t + 6)}, {s(t)}
    s_mul_i32 {s(t + 6)}, {s(t + 6)}, 1280
    s_lshl_b32 {s(t + 5)}, {s(t + 5)}, 3
    s_add_u32 {s(t + 6)}, {s(t + 6)}, {s(t + 5)}
    v_mul_u32_u24 {v(x1)}, 10240, {v(n)}
    v_lshl_add_u32 {v(x1)}, {v(g)}, 3, {v(x1)}
    v_add_u32 {v(o.x0)}, {s(t + 6)}, {v(x1)}
    """)
    return o


def wo_reg(o, idx):
    return a(160 + 4 * idx, 4) if idx < 24 else v(o.wl, 4)


def wo_load(k, o, sc=""):
    t = 97
    k(f"""
    s_lshl_b32 {s(t)}, {s(sCB)}, 2
    s_add_u32 {s(t)}, {s(t)}, {s(sWAVE)}
    s_mul_i32 {s(t)}, {s(t)}, {25 * 1024}
    s_add_u32 {s(t)}, {s(t)}, {WOF}
    """)
    for i in range(25):
        k(f"buffer_load_dwordx4 {wo_reg(o, i)}, {v(o.rb)}, {srd(SWS)}, {s(t)} offen offset:{1024 * (i % 4)} {sc}")
        if i % 4 == 3:
            k(f"s_add_u32 {s(t)}, {s(t)}, 4096")


def o_resid_load(k, o, rs, layer, chunk, sc=""):
    t = 96
    if layer == 0:
        k(f"""
        s_mov_b32 {s(t)}, {chunk * 1024 * 1280}
        s_mov_b32 {s(t + 1)}, {chunk * 1024 * 1280 + 5120}
        buffer_load_dwordx2 {v(rs, 2)}, {v(o.x0)}, {srd(SX)}, {s(t)} offen
        buffer_load_dwordx2 {v(rs + 2, 2)}, {v(o.x0)}, {srd(SX)}, {s(t + 1)} offen
        v_lshrrev_b32 {v(rs + 4)}, 5, v1
        v_mul_u32_u24 {v(rs + 4)}, {5120 - 16}, {v(rs + 4)}
        v_bfe_u32 {v(rs + 5)}, v1, 4, 1
        v_lshlrev_b32 {v(rs + 5)}, 2, {v(rs + 5)}
        v_sub_u32 {v(rs + 4)}, {v(rs + 4)}, {v(rs + 5)}
        v_add_u32 {v(rs + 4)}, {v(rs + 4)}, {v(o.x0)}
        s_mul_i32 {s(t + 1)}, {s(sWAVE)}, 24
        s_sub_u32 {s(t + 1)}, {chunk * 1024 * 1280 + 128}, {s(t + 1)}
        buffer_load_dword {v(rs + 4)}, {v(rs + 4)}, {srd(SX)}, {s(t + 1)} offen
        """)
    else:
        k(f"s_mov_b32 {s(t)}, {X2 + chunk * 2048}")
        k(f"buffer_load_dwordx4 {v(rs, 4)}, {v(o.xo)}, {srd(SWS)}, {s(t)} offen {sc}")
        k(f"s_add_u32 {s(t + 1)}, {s(sOM)}, {X2 + chunk * 2048}")
        k(f"buffer_load_dword {v(rs + 4)}, {v(o.sa)}, {srd(SWS)}, {s(t + 1)} offen {sc}")


def o_load(k, o, of, layer, chunk, sc=""):
    t = 96
    base = OBL[layer]
    for u in range(4):
        k(f"s_mov_b32 {s(t)}, {base + chunk * 4096 + u * 32768}")
        for r in range(2):
            k(f"buffer_load_dwordx4 {v(of + 8 * u + 4 * r, 4)}, {v(o.lm)}, {srd(SWS)}, {s(t)} offen offset:{256 * r} {sc}")
    for hd in range(2):
        k(f"s_mov_b32 {s(t)}, {base + chunk * 2048 + hd * 16384}")
        for r in range(2):
            tok = k(f"buffer_load_dwordx2 {v(of + 32 + 4 * r + 2 * hd, 2)}, {v(o.lr)}, {srd(SWS)}, {s(t)} offen offset:{128 * r} {sc}")
    return tok


SX0 = RB0 + 32768
sOA, sOM = 35, 36


def o_addr(k, o, regs, tmp):
    o.wa = [None] + list(regs[:4])
    o.ra, o.rm, o.sw, o.sr, o.so, o.one = regs[4:10]
    wa, ra, rm, sw, sr, so, one, rb = o.wa, o.ra, o.rm, o.sw, o.sr, o.so, o.one, tmp
    t = sT + 7
    k(f"v_add_u32 {v(rb)}, {XT0}, {v(o.rb)}\n s_lshl_b32 {s(t)}, {s(sWAVE)}, 11\n v_add_u32 {v(wa[4])}, {s(t)}, {v(rb)}")
    for c in range(1, 4):
        k(f"""
        s_add_u32 {s(t)}, {s(sWAVE)}, {c}
        s_and_b32 {s(t)}, {s(t)}, 3
        s_mul_i32 {s(t)}, {s(t)}, 6144
        v_add_u32 {v(wa[c])}, {s(t)}, {v(rb)}
        """)
    k(f"""
    s_mul_i32 {s(t)}, {s(sWAVE)}, 6144
    v_add_u32 {v(ra)}, {s(t)}, {v(rb)}
    s_lshl_b32 {s(t)}, {s(sWAVE)}, 8
    s_add_u32 {s(t)}, {s(t)}, {XT0}
    v_and_b32 {v(so)}, 15, v1
    v_lshl_add_u32 {v(sw)}, {v(so)}, 4, {s(t)}
    v_lshrrev_b32 {v(one)}, 5, v1
    v_lshl_add_u32 {v(rm)}, {v(one)}, 10, {v(sw)}
    v_bfe_u32 {v(one)}, v1, 4, 1
    v_lshl_add_u32 {v(rm)}, {v(one)}, 3, {v(rm)}
    v_lshlrev_b32 {v(so)}, 2, {v(so)}
    v_lshl_add_u32 {v(so)}, {v(one)}, 10, {v(so)}
    s_lshl_b32 {s(t)}, {s(sWAVE)}, 6
    v_lshl_add_u32 {v(sr)}, {v(one)}, 3, {s(t)}
    v_and_b32 {v(one)}, 12, v1
    v_lshl_add_u32 {v(sr)}, {v(one)}, 2, {v(sr)}
    v_and_b32 {v(one)}, 2, v1
    v_lshl_add_u32 {v(sr)}, {v(one)}, 1, {v(sr)}
    v_add_u32 {v(sr)}, {XT0 + SX0}, {v(sr)}
    v_lshrrev_b32 {v(one)}, 4, v1
    v_lshl_add_u32 {v(sw)}, {v(one)}, 2, {v(sw)}
    v_mov_b32 {v(one)}, 0x3f803f80
    """)


def o_scalars(k):
    t = sT
    k(f"""
    s_lshl_b32 {s(t)}, {s(sWAVE)}, 6
    s_and_b32 {s(sOA)}, {s(sOG)}, 3
    s_lshl_b32 {s(sOA)}, {s(sOA)}, 13
    s_add_u32 {s(sOA)}, {s(sOA)}, {s(t)}
    s_lshr_b32 {s(t)}, {s(sOG)}, 4
    s_lshl_b32 {s(t)}, {s(t)}, 11
    s_add_u32 {s(sOA)}, {s(sOA)}, {s(t)}
    s_and_b32 {s(t)}, {s(sOG)}, 12
    s_lshl_b32 {s(t)}, {s(t)}, 6
    s_add_u32 {s(sOA)}, {s(sOA)}, {s(t)}
    s_mul_i32 {s(sOM)}, {s(sCB)}, 20
    s_add_u32 {s(sOM)}, {s(sOM)}, {s(sWAVE)}
    s_add_u32 {s(sOM)}, {s(sOM)}, 16
    s_lshl_b32 {s(sOM)}, {s(sOM)}, 14
    """)


def o_compute(k, o, R, of, rs, layer, chunk, sc="", mid=(), tail=(), extra=()):
    T = R.fork()
    acc = T.get(40, 4)
    pr, pm = acc + 8, acc + 32
    xf = T.get(10)
    pq = T.get()
    pk = T.get(4, 4)
    st = T.get(6)
    assert T.n <= 144
    wa, ra, rm, sw, sr, so, one = o.wa, o.ra, o.rm, o.sw, o.sr, o.so, o.one
    t = sT
    m = k.mark()
    for i in range(6):
        k(f"v_mov_b32 {v(st + i)}, 0")
    base = X1L[layer] + chunk * 2048
    k(f"""
    s_mov_b32 {s(t)}, {base}
    s_add_u32 {s(t + 1)}, {s(sOM)}, {base}
    s_add_u32 {s(t + 2)}, {s(sOA)}, {SA + layer * SA_SZ + chunk * 4096}
    s_mov_b32 {s(t + 3)}, 0x99999999
    s_mov_b32 {s(t + 4)}, 0x99999999
    """)
    f1 = k.cut(m)
    for i in range(5):
        k(f"v_lshlrev_b32 {v(xf + 2 * i)}, 16, {v(rs + i)}\n v_and_b32 {v(xf + 2 * i + 1)}, 0xffff0000, {v(rs + i)}")
    f2 = k.cut(m)
    entry = k.lab("oe")
    if STAMPS.get("o"):
        k("s_waitcnt vmcnt(0)")
        stamp(k, "old")
    o2 = (lambda n: stamp(k, n, True)) if STAMPS.get("o2") == layer + 1 else (lambda n: None)
    o2("oS")
    k(f"{entry}:")
    mid = vm_items(mid)
    pend = []
    for c in (4, 1, 2, 3, 0):
        n = 0
        if c == 1:
            o2("oc4")
        for u in range(5):
            for r in range(2):
                d = v(acc + 8 * c + 4 * r, 4)
                cin = d if u else (v(xf + 4 * r, 4) if c == 0 else "0")
                k(f"v_mfma_f32_16x16x32_bf16 {d}, {wo_reg(o, 5 * u + c)}, {v(of + 8 * u + 4 * r, 4)}, {cin}")
                n += 1
                if c == 1 and n == 6:
                    k(f"v_cmp_u_f32 vcc, {v(acc + 32)}, {v(acc + 36)}")
                    if layer == 1:
                        k(f"s_or_b64 vcc, vcc, {s(sC, 2)}")
                    retry(k, entry, lambda: (o_load(k, o, of, layer, chunk, sc), o_resid_load(k, o, rs, layer, chunk, sc)),
                          "o", count=2 * layer + chunk)
                elif c == 1 and layer == 1 and n == 3:
                    k(f"v_max3_u32 {v(pk)}, {v(rs)}, {v(rs + 1)}, {v(rs + 2)}\n v_max3_u32 {v(pk)}, {v(pk)}, {v(rs + 3)}, {v(rs + 4)}")
                elif c == 1 and layer == 1 and n == 4:
                    k(f"v_cmp_eq_u32 {s(sC, 2)}, -1, {v(pk)}")
                elif pend and n in ((5, 6) if c == 0 else (7, 9)):
                    k(pend.pop(0))
                elif c in (2, 3) and n in (1, 3, 5) and mid:
                    k.put(mid.pop(0))
                elif c == 4:
                    k.put(f1[:2])
                    del f1[:2]
                elif c in (2, 3):
                    k.put(f2[:2])
                    del f2[:2]
        if c:
            off = RB0 + (24576 if c == 4 else 2048 * (c - 1))
            pend = [f"ds_write_b128 {v(wa[c])}, {v(acc + 8 * c + 4 * r, 4)} offset:{off + 1024 * r}" for r in range(2)]
    assert not mid and not f1 and not f2
    o2("omf")
    k("s_waitcnt lgkmcnt(0)\n s_barrier")
    o2("ob1")
    for c2 in range(3):
        for r2 in range(2):
            k(f"ds_read_b128 {v(pr + 8 * c2 + 4 * r2, 4)}, {v(ra)} offset:{RB0 + 2048 * c2 + 1024 * r2}")
    for w in range(4):
        k(f"ds_read_b64 {v(pm + 2 * w, 2)}, {v(rm)} offset:{RB0 + 24576 + 2048 * w}")
    if STAMPS.get("o"):
        stamp(k, "omf")
    tail = vm_items(tail)
    n0, n1 = OTAIL
    k.put(flat(tail[:n0]))
    for c2 in range(3):
        for i in range(0, 8, 2):
            k(f"v_pk_add_f32 {v(acc + i, 2)}, {v(acc + i, 2)}, {v(pr + 8 * c2 + i, 2)}")
    for i in range(0, 8, 2):
        k(f"v_cvt_pk_bf16_f32 {v(pk + i // 2)}, {v(acc + i)}, {v(acc + i + 1)}")
    for w in range(4):
        k(f"v_pk_add_f32 {v(xf + 8, 2)}, {v(xf + 8, 2)}, {v(pm + 2 * w, 2)}")
    k(f"v_cvt_pk_bf16_f32 {v(pq)}, {v(xf + 8)}, {v(xf + 9)}")
    k(f"buffer_store_dwordx4 {v(pk, 4)}, {v(o.xo)}, {srd(SWS)}, {s(t)} offen {sc}")
    k(f"buffer_store_dword {v(pq)}, {v(o.sa)}, {srd(SWS)}, {s(t + 1)} offen {sc}")
    for i in range(4):
        k(f"v_dot2c_f32_bf16 {v(st + (i & 2))}, {v(pk + i)}, {v(one)}")
        k(f"v_dot2c_f32_bf16 {v(st + (i & 2) + 1)}, {v(pk + i)}, {v(pk + i)}")
    k(f"""
    v_dot2c_f32_bf16 {v(st + 4)}, {v(pq)}, {v(one)}
    v_dot2c_f32_bf16 {v(st + 5)}, {v(pq)}, {v(pq)}
    v_permlane32_swap_b32 {v(st)}, {v(st + 2)}
    v_permlane32_swap_b32 {v(st + 1)}, {v(st + 3)}
    v_pk_add_f32 {v(st, 2)}, {v(st, 2)}, {v(st + 2, 2)}
    v_pk_add_f32 {v(st, 2)}, {v(st, 2)}, {v(st + 4, 2)}
    v_permlane16_swap_b32 {v(st)}, {v(st + 1)}
    v_add_f32 {v(st)}, {v(st)}, {v(st + 1)}
    ds_write_b32 {v(sw)}, {v(st)} offset:{SX0}
    """)
    o2("ost")
    k.put(flat(tail[n0:n1]))
    o2("otl")
    k("s_waitcnt lgkmcnt(0)\n s_barrier")
    o2("ob2")
    k(f"""
    ds_read2st64_b32 {v(st, 2)}, {v(sr)} offset0:0 offset1:1
    ds_read2st64_b32 {v(st + 2, 2)}, {v(sr)} offset0:2 offset1:3
    """)
    k.put(list(extra))
    k(f"""
    v_pk_add_f32 {v(st, 2)}, {v(st, 2)}, {v(st + 2, 2)}
    v_add_f32 {v(st)}, {v(st)}, {v(st + 1)}
    v_cndmask_b32 {v(st)}, {v(st)}, 1.0, {s(t + 3, 2)}
    s_mov_b64 exec, {s(sLO32, 2)}
    buffer_atomic_add_f32 {v(st)}, {v(so)}, {srd(SWS)}, {s(t + 2)} offen
    s_mov_b64 exec, -1
    """)
    if STAMPS.get("o"):
        stamp(k, "oat")
    k.put(flat(tail[n1:]))


OTAIL = [6, 99]


def s2_load(k, d, sidx, sc=""):
    o, la = d + 20, d + 21
    t = sT
    k(f"""
    s_and_b32 {s(t)}, {s(sidx)}, 3
    s_lshl_b32 {s(t)}, {s(t)}, 12
    s_lshr_b32 {s(t + 1)}, {s(sidx)}, 2
    s_lshl_b32 {s(t + 1)}, {s(t + 1)}, 7
    s_add_u32 {s(sidx)}, {s(t)}, {s(t + 1)}
    v_lshrrev_b32 {v(o)}, 3, v0
    v_and_b32 {v(la)}, 7, v0
    v_lshlrev_b32 {v(la)}, 4, {v(la)}
    v_lshl_add_u32 {v(o)}, {v(o)}, 14, {v(la)}
    s_sub_u32 {s(t)}, s2, 160
    s_cmp_lt_u32 {s(t)}, 64
    s_cselect_b32 {s(t)}, 0, {OOB}
    v_add_u32 {v(o)}, {s(t)}, {v(o)}
    """)
    s2_reload(k, d, sidx, sc)


def s2_reload(k, d, sidx, sc):
    o, t = d + 20, sT
    k(f"s_add_u32 {s(t + 1)}, {s(sidx)}, {X2}")
    for e in range(5):
        k(f"buffer_load_dwordx4 {v(d + 4 * e, 4)}, {v(o)}, {srd(SWS)}, {s(t + 1)} offen {sc}")
        if e < 4:
            k(f"s_add_u32 {s(t + 1)}, {s(t + 1)}, {32 * 16384}")


def s2_finish(k, d, sidx, lds0, sc=""):
    o, la, one, x1, st = d + 20, d + 21, d + 22, d + 23, d + 24
    t = sT
    k(f"""
    v_mov_b32 {v(one)}, 0x3f803f80
    s_lshl_b32 {s(t)}, {s(sWAVE)}, 7
    s_add_u32 {s(t)}, {s(t)}, {lds0}
    v_lshrrev_b32 {v(x1)}, 4, v1
    v_lshl_add_u32 {v(la)}, {v(x1)}, 2, {v(la)}
    v_add_u32 {v(la)}, {s(t)}, {v(la)}
    """)
    entry = k.lab("se")
    k(f"{entry}:")
    for i in range(4):
        k(f"v_mov_b32 {v(st + i)}, 0")
    for e in range(5):
        for i in range(4):
            k(f"v_dot2c_f32_bf16 {v(st + (i & 2))}, {v(d + 4 * e + i)}, {v(one)}")
            k(f"v_dot2c_f32_bf16 {v(st + (i & 2) + 1)}, {v(d + 4 * e + i)}, {v(d + 4 * e + i)}")
    k(f"v_cmp_u_f32 vcc, {v(st + 1)}, {v(st + 3)}")
    retry(k, entry, lambda: s2_reload(k, d, sidx, sc), "s2", count=8)
    k(f"""
    v_permlane32_swap_b32 {v(st)}, {v(st + 2)}
    v_permlane32_swap_b32 {v(st + 1)}, {v(st + 3)}
    v_pk_add_f32 {v(st, 2)}, {v(st, 2)}, {v(st + 2, 2)}
    v_permlane16_swap_b32 {v(st)}, {v(st + 1)}
    v_add_f32 {v(st)}, {v(st)}, {v(st + 1)}
    v_add_f32_dpp {v(st)}, {v(st)}, {v(st)} row_ror:8 row_mask:0xf bank_mask:0xf
    ds_write_b32 {v(la)}, {v(st)}
    v_and_b32 {v(o)}, 15, v0
    v_lshlrev_b32 {v(o)}, 3, {v(o)}
    v_add_u32 {v(la)}, {lds0}, {v(o)}
    v_mov_b32 {v(x1)}, {OOB}
    v_cmp_gt_u32 vcc, 16, v0
    v_cndmask_b32 {v(o)}, {v(x1)}, {v(o)}, vcc
    s_add_u32 {s(t)}, {s(sidx)}, {ST + ST_SZ}
    s_waitcnt lgkmcnt(0)
    s_barrier
    """)
    for w in range(4):
        k(f"ds_read_b64 {v(d + 2 * w, 2)}, {v(la)} offset:{128 * w}")
    k(f"""
    v_pk_add_f32 {v(d, 2)}, {v(d, 2)}, {v(d + 2, 2)}
    v_pk_add_f32 {v(d + 4, 2)}, {v(d + 4, 2)}, {v(d + 6, 2)}
    v_pk_add_f32 {v(d, 2)}, {v(d, 2)}, {v(d + 4, 2)}
    """)
    rstd_nm(k, d, d + 1, x1)
    return k(f"buffer_store_dwordx2 {v(d, 2)}, {v(o)}, {srd(SWS)}, {s(t)} offen {sc}")


U0 = AT0
U_PH, U_CH = 1216, 4864
Y0 = U0 + 4 * U_CH
Y_PH, Y_CH = 1056, 4224
assert Y0 + 4 * Y_CH == XT0
KL0 = XT0 + 5 * XG
KL_END = KL0 + 4 * K_PITCH


def c_setup(k, R):
    c = QState()
    c.go, c.uw, c.ur, c.kr, c.yw, c.yr, c.oo = (R.get() for _ in range(7))
    c.car = R.get(3)
    x1, x2 = c.car, c.car + 1
    t = sT
    k(f"""
    s_lshl_b32 {s(t)}, {s(sWAVE)}, 12
    v_lshl_add_u32 {v(c.go)}, v1, 4, {s(t)}
    s_mul_i32 {s(t)}, {s(sWAVE)}, {U_PH}
    s_add_u32 {s(t)}, {s(t)}, {U0 + 192}
    v_lshl_add_u32 {v(c.uw)}, v1, 2, {s(t)}
    s_mul_i32 {s(t)}, {s(sWAVE)}, {U_CH}
    s_add_u32 {s(t)}, {s(t)}, {U0 + 192 - 16 - 96}
    v_and_b32 {v(x1)}, 3, v1
    v_mul_u32_u24 {v(x1)}, {U_PH}, {v(x1)}
    v_bfe_u32 {v(x2)}, v1, 2, 3
    v_lshl_add_u32 {v(x1)}, {v(x2)}, 4, {v(x1)}
    v_lshrrev_b32 {v(x2)}, 5, v1
    v_lshl_add_u32 {v(x1)}, {v(x2)}, 4, {v(x1)}
    v_add_u32 {v(c.ur)}, {s(t)}, {v(x1)}
    s_mul_i32 {s(t)}, {s(sWAVE)}, {K_PITCH}
    s_add_u32 {s(t)}, {s(t)}, {KL0 + 128 - 32}
    v_lshlrev_b32 {v(x2)}, 6, {v(x2)}
    v_sub_u32 {v(x2)}, {s(t)}, {v(x2)}
    v_bfe_u32 {v(x1)}, v1, 4, 1
    v_lshl_add_u32 {v(x2)}, {v(x1)}, 5, {v(x2)}
    v_and_b32 {v(x1)}, 3, v1
    v_lshl_add_u32 {v(x2)}, {v(x1)}, 3, {v(x2)}
    v_bfe_u32 {v(x1)}, v1, 2, 2
    v_lshlrev_b32 {v(x1)}, 3, {v(x1)}
    v_sub_u32 {v(c.kr)}, {v(x2)}, {v(x1)}
    s_mul_i32 {s(t)}, {s(sWAVE)}, {Y_CH}
    s_add_u32 {s(t)}, {s(t)}, {Y0}
    v_and_b32 {v(x1)}, 3, v1
    v_mul_u32_u24 {v(x1)}, {Y_PH}, {v(x1)}
    v_and_b32 {v(x2)}, 60, v1
    v_add3_u32 {v(c.yw)}, {v(x1)}, {v(x2)}, {s(t)}
    s_mul_i32 {s(t)}, {s(sWAVE)}, {Y_PH}
    s_add_u32 {s(t)}, {s(t)}, {Y0}
    v_lshl_add_u32 {v(c.yr)}, v1, 3, {s(t)}
    s_mul_i32 {s(t)}, {s(sWAVE)}, 1280
    s_lshl_b32 {s(t + 1)}, {s(sQUAD)}, 3
    s_add_u32 {s(t)}, {s(t)}, {s(t + 1)}
    v_mul_u32_u24 {v(x1)}, 10240, v1
    v_add_u32 {v(c.oo)}, {s(t)}, {v(x1)}
    """)
    return c


def c_zero(k, c, R):
    T = R.fork()
    x1, x2 = T.get(), T.get()
    z = T.get(2)
    k(f"""
    v_lshrrev_b32 {v(x1)}, 4, v0
    v_mul_u32_u24 {v(x1)}, {U_PH}, {v(x1)}
    v_and_b32 {v(x2)}, 15, v0
    v_lshl_add_u32 {v(x1)}, {v(x2)}, 3, {v(x1)}
    v_add_u32 {v(x1)}, {U0 + 64}, {v(x1)}
    v_mov_b32 {v(z)}, 0
    v_mov_b32 {v(z + 1)}, 0
    ds_write_b64 {v(x1)}, {v(z, 2)}
    v_mov_b32 {v(c.car)}, 0
    v_mov_b32 {v(c.car + 1)}, 0
    v_mov_b32 {v(c.car + 2)}, 0
    """)


def k_from_global(k, R):
    T = R.fork()
    o = T.get()
    t = sT
    k(f"""
    s_mul_i32 {s(t)}, {s(sWAVE)}, {K_PITCH}
    s_mul_i32 {s(t + 1)}, {s(sQUAD)}, {4 * K_PITCH}
    s_add_u32 {s(t + 1)}, {s(t + 1)}, {s(t)}
    s_add_u32 {s(t + 1)}, {s(t + 1)}, {KB}
    s_add_u32 m0, {s(t)}, {KL0}
    v_lshlrev_b32 {v(o)}, 4, v1
    """)
    for e in range(4):
        k(f"buffer_load_dwordx4 {v(o)}, {srd(SWS)}, {s(t + 1)} offen offset:{1024 * e} lds")
    k(f"""
    s_add_u32 m0, {s(t)}, {KL0 + 4096}
    s_add_u32 {s(t + 1)}, {s(t + 1)}, 4096
    s_mov_b64 exec, 15
    """)
    tok = k(f"buffer_load_dwordx4 {v(o)}, {srd(SWS)}, {s(t + 1)} offen lds")
    k("s_mov_b64 exec, -1")
    return tok


def c_load(k, c, dx, ds_, layer, chunk, sc=""):
    t = 96
    k(f"""
    s_lshl_b32 {s(t)}, {s(sQUAD)}, 14
    s_add_u32 {s(t)}, {s(t)}, {X1L[layer]}
    s_lshl_b32 {s(t + 1)}, {s(sWAVE)}, 12
    s_add_u32 {s(t + 1)}, {s(t + 1)}, {SA + layer * SA_SZ + 4096 * chunk}
    """)
    for e in range(2):
        k(f"buffer_load_dwordx4 {v(dx[e], 4)}, {v(c.go)}, {srd(SWS)}, {s(t)} offen offset:{2048 * chunk + 1024 * e} {sc}")
    for i in range(4):
        c.ld_tok = k(f"buffer_load_dwordx4 {v(ds_ + 4 * i, 4)}, {v(c.go)}, {srd(SWS)}, {s(t + 1)} offen offset:{1024 * i} {sc}")


def c_check(k, c, tmp, dx, ds_, layer, chunk, sc=""):
    entry = k.lab("ce")
    k.wait(c.ld_tok)
    k(f"""
    {entry}:
    v_max3_u32 {v(tmp)}, {v(dx[0])}, {v(dx[0] + 1)}, {v(dx[0] + 2)}
    v_max3_u32 {v(tmp)}, {v(tmp)}, {v(dx[0] + 3)}, {v(dx[1])}
    v_max3_u32 {v(tmp)}, {v(tmp)}, {v(dx[1] + 1)}, {v(dx[1] + 2)}
    v_max_u32 {v(tmp)}, {v(tmp)}, {v(dx[1] + 3)}
    v_cmp_eq_u32 {s(sC, 2)}, -1, {v(tmp)}
    v_min3_f32 {v(tmp + 1)}, {v(ds_)}, {v(ds_ + 3)}, {v(ds_ + 4)}
    v_min3_f32 {v(tmp + 1)}, {v(tmp + 1)}, {v(ds_ + 7)}, {v(ds_ + 8)}
    v_min3_f32 {v(tmp + 1)}, {v(tmp + 1)}, {v(ds_ + 11)}, {v(ds_ + 12)}
    v_min_f32 {v(tmp + 1)}, {v(tmp + 1)}, {v(ds_ + 15)}
    v_cmp_neq_f32 vcc, {f2i(8.0)}, {v(tmp + 1)}
    s_or_b64 vcc, vcc, {s(sC, 2)}
    """)
    retry(k, entry, lambda: c_load(k, c, dx, ds_, layer, chunk, sc), "c", count=4 + 2 * layer + chunk)


def c_norm(k, c, tmp, xf, dx, ds_, chunk):
    for e in range(2):
        x, sa, sb, f = dx[e], ds_ + 8 * e + 1, ds_ + 8 * e + 5, xf + 8 * e
        a_, _ = grab(k, lambda: rstd_nm(k, sa, sa + 1, tmp))
        b_, _ = grab(k, lambda: rstd_nm(k, sb, sb + 1, tmp + 1))
        for p_, q_ in zip(a_, b_):
            k.put([p_, q_])
        for tk in range(2):
            for j in range(2):
                k(f"v_lshlrev_b32 {v(f + 4 * j + tk)}, 16, {v(x + 2 * tk + j)}")
                k(f"v_and_b32 {v(f + 4 * j + 2 + tk)}, 0xffff0000, {v(x + 2 * tk + j)}")
        for ch in range(4):
            k(f"""
            v_fma_f32 {v(tmp)}, {v(f + 2 * ch)}, {v(sa)}, {v(sa + 1)}
            v_fma_f32 {v(tmp + 1)}, {v(f + 2 * ch + 1)}, {v(sb)}, {v(sb + 1)}
            v_cvt_pk_bf16_f32 {v(x + ch)}, {v(tmp)}, {v(tmp + 1)}
            """)
        for ch in range(4):
            k(f"ds_write_b32 {v(c.uw)}, {v(x + ch)} offset:{U_CH * ch + 512 * chunk + 256 * e}")


def k_frag(k, c, b, idx):
    k(f"ds_read_b64_tr_b16 {v(b, 2)}, {v(c.kr)} offset:{128 * idx + 32}")
    k(f"ds_read_b64_tr_b16 {v(b + 2, 2)}, {v(c.kr)} offset:{128 * idx}")


def c_mfma(k, c, ops, accs, pool, first, dist=4, held={}, held_until=1 << 30):
    m0 = k.mark()
    keys = [(("u", tau, c0), ("h" if (p < held_until and 4 * i + c0 in held) else "k", 4 * i + c0))
            for p, (_, tau, i, c0) in enumerate(ops)]
    where = {}
    free = list(pool)

    def next_use(key, p):
        for j in range(p, len(ops)):
            if key in keys[j]:
                return j
        return 1 << 30

    def ensure(key, p):
        if key in where or key[0] == "h":
            return
        if not free:
            victim = max(where, key=lambda x: next_use(x, p))
            assert next_use(victim, p) > p + dist, "fragment pool too small"
            free.append(where.pop(victim))
        b = free.pop(0)
        where[key] = b
        if key[0] == "u":
            k(f"ds_read_b128 {v(b, 4)}, {v(c.ur)} offset:{128 * key[1] + 32 * (3 - key[2])}")
        else:
            k_frag(k, c, b, key[1])
    for j in range(min(dist, len(ops))):
        for key in keys[j]:
            ensure(key, 0)
    started = set()
    for p, (tile, tau, i, c0) in enumerate(ops):
        d = v(accs[tile], 16)
        cin = "0" if (tile in first and tile not in started) else d
        started.add(tile)
        kb = held[keys[p][1][1]] if keys[p][1][0] == "h" else where[keys[p][1]]
        k(f"v_mfma_f32_32x32x16_bf16 {d}, {v(where[keys[p][0]], 4)}, {v(kb, 4)}, {cin}")
        if p + dist < len(ops):
            for key in keys[p + dist]:
                ensure(key, p + 1)
    return k.cut(m0)


def tri_ops(t0):
    return [(t, t - i, i, c0) for t in range(t0, t0 + 4) for i in range(t - t0 + 1) for c0 in range(4)]


def cross_ops():
    return [(tau + i, tau, i, c0) for c0 in range(4) for i in range(1, 8) for tau in range(4) if 4 <= tau + i <= 7]


def c_horner(k, c, acc, tl, tmp):
    m0 = k.mark()
    for ph in (3, 2, 1):
        for g in range(4):
            prev = c.car + (ph - 1) if g == 0 else acc + 4 * (g - 1) + ph
            k(f"v_cndmask_b32 {v(tmp + g)}, {v(acc + 4 * g + ph)}, {v(prev)}, {s(sM63, 2)}")
        k(f"v_mov_b32 {v(c.car + ph - 1)}, {v(acc + 12 + ph)}")
        for g in range(4):
            r = acc + 4 * g + ph - 1
            k(f"v_add_f32_dpp {v(r)}, {v(tmp + g)}, {v(r)} wave_ror:1 row_mask:0xf bank_mask:0xf")
    for g in range(4):
        k(f"ds_write_b32 {v(c.yw)}, {v(acc + 4 * g)} offset:{64 * (4 * tl + g)}")
    return k.cut(m0)


def mfma_lack(out, nxt):
    c = next((i for i in nxt if i.kind not in ("label", "pseudo")), None)
    d, lack = 0, 0
    for p in reversed(out[-14:]):
        if c is not None and p.kind == "mfma":
            lack = max(lack, Kernel.need(p, c) - d)
        d += p.states()
    return lack


def cyc(lst, prev):
    t = 0
    for i in lst:
        if i.kind == "label":
            continue
        if i.kind == "pseudo":
            t += 4 if i.tok and i.mods == "" else 0
        elif i.kind == "valu":
            t += 8 if i.mn.startswith(TRANS + ("v_permlane",)) else 4
        elif i.kind in ("ds", "vmem", "dma"):
            t += (8 if prev == "valu" else 0) + {"ds_write_b32": 8, "ds_write_b64": 12, "ds_write_b128": 25}.get(i.mn, 4)
        elif i.mn == "s_nop":
            t += 4 * i.states()
        elif i.mn == "s_barrier":
            t += 12
        else:
            t += 4
        if i.kind in ("valu", "ds", "vmem", "dma"):
            prev = i.kind
    return t, prev


ROOM = [8]


def weave(main, after, flush=(), vm_gap=2, vm={}):
    out, q, n = [], [], 0
    idx, hold, last_vm = 0, 0, -99
    pend, qv = [], []

    def emit(lst):
        for i in lst:
            hit = [p for p, d in enumerate(pend) if d & i.uses]
            if hit:
                del pend[:hit[-1] + 1]
            if i.kind == "ds":
                pend.append(set(i.defs))
            out.append(i)
    while idx < len(main):
        i = main[idx]
        if i.kind == "mfma" and n + 1 in flush:
            emit(flat([e for e in q if not isinstance(e, int)]))
            q = []
        emit([i])
        idx += 1
        if i.kind != "mfma":
            continue
        n += 1
        if n in after:
            q += after[n]
        must = []
        while idx < len(main) and main[idx].kind != "mfma":
            must.append(main[idx])
            idx += 1
        qv += vm.get(n, [])
        if qv and n - last_vm >= vm_gap and len(must) <= 2:
            must += flat([qv.pop(0)])
            last_vm = n
        emit(must)
        used, prev = cyc(must, "mfma")
        room = 4 * i.passes - ROOM[0] - used
        if idx < len(main) and any(d & main[idx].uses for d in pend):
            room -= 4
        full = room
        hold = max(hold - 1, 0)
        while q and not hold:
            if isinstance(q[0], int):
                hold = q.pop(0)
                continue
            e = flat([q[0]])
            lack = mfma_lack(out, e)
            if lack > 0:
                st = min(lack, room // 4)
                if st > 0:
                    emit([Ins(f"s_nop {st - 1}")])
                    room -= 4 * st
                if st < lack:
                    break
            isvm = any(x.kind in ("vmem", "dma") for x in e)
            c, p2 = cyc(e, prev)
            if any(d & e[0].uses for d in pend):
                c += 4
            if c > room and not (room == full and (c > 24 or full >= 16)):
                break
            q.pop(0)
            emit(e)
            room -= c
            prev = p2
            if isvm:
                last_vm = n
    return out, flat(qv) + flat([e for e in q if not isinstance(e, int)])


def c_out(k, c, R, xf, layer, chunk, sc="", halves=(0, 1)):
    T = R.fork()
    y = T.get(16, 4)
    pk = T.get(8, 4)
    t = sT
    toks = []
    for e in halves:
        for ch in range(4):
            rd = k(f"ds_read_b64 {v(y + 8 * e + 2 * ch, 2)}, {v(c.yr)} offset:{Y_CH * ch + 512 * e}")
    if layer == 0:
        k(f"s_lshl_b32 {s(t)}, {s(sQUAD)}, 14\n s_add_u32 {s(t)}, {s(t)}, {X2}")
    k.wait(rd)
    for e in halves:
        f, yy, p = xf + 8 * e, y + 8 * e, pk + 4 * e
        for i in range(8):
            k(f"v_add_f32 {v(yy + i)}, {v(yy + i)}, {v(f + i)}")
        for tk in range(2):
            for j in range(2):
                k(f"v_cvt_pk_bf16_f32 {v(p + 2 * tk + j)}, {v(yy + 4 * j + tk)}, {v(yy + 4 * j + 2 + tk)}")
        if layer == 0:
            toks.append(k(f"buffer_store_dwordx4 {v(p, 4)}, {v(c.go)}, {srd(SWS)}, {s(t)} offen offset:{2048 * chunk + 1024 * e} {sc}"))
        else:
            for tk in range(2):
                k(f"s_mov_b32 {s(t)}, {(256 * chunk + 128 * e + tk) * 5120}")
                toks.append(k(f"buffer_store_dwordx2 {v(p + 2 * tk, 2)}, {v(c.oo)}, {srd(SOUT)}, {s(t)} offen"))
    return toks


sAA, sWA = 86, 87
FL_DONE, FL_CNT, FL_HINT = FL, FL + 8192, FL + 9216
SPIN_MAX = 1 << 20


sM8 = 50


def sync_setup(k):
    t = sT
    k(f"""
    s_and_b32 {s(t)}, s2, 7
    s_lshl_b32 {s(sAA)}, {s(t)}, 7
    s_add_u32 {s(sAA)}, {s(sAA)}, {FL}
    s_lshl_b32 {s(sWA)}, {s(t)}, 10
    s_add_u32 {s(sWA)}, {s(sWA)}, {FL}
    s_add_u32 {s(sWA + 2)}, {s(sWA)}, 16384
    v_cmp_gt_u32 {s(sM8, 2)}, 8, v0
    v_cmp_eq_u32 vcc, 0, v0
    v_lshlrev_b32 {v(vL7)}, 7, v1
    v_mov_b32 {v(vL0)}, {OOB}
    v_cndmask_b32 {v(vL7)}, {v(vL0)}, {v(vL7)}, {s(sM8, 2)}
    v_cndmask_b32 {v(vL0)}, {v(vL0)}, 0, vcc
    v_mov_b32 {v(vARR)}, 0
    """)


def marks(k, z, base, total, first=160):
    t = 88
    n = -(-total // ((256 - first) * 4096))
    m = k.mark()
    for i in range(4):
        k(f"v_mov_b32 {v(z + i)}, -1")
    k(f"""
    v_lshlrev_b32 {v(z + 4)}, 4, v0
    s_sub_u32 {s(t)}, s2, {first}
    s_mul_i32 {s(t)}, {s(t)}, {n * 4096}
    s_min_u32 {s(t)}, {s(t)}, {total - n * 4096}
    s_add_u32 {s(t)}, {s(t)}, {base}
    """)
    for e in range(n):
        if e:
            k(f"s_add_u32 {s(t)}, {s(t)}, 4096")
        tok = k(f"buffer_store_dwordx4 {v(z, 4)}, {v(z + 4)}, {srd(SWS)}, {s(t)} offen sc1")
    return vm_items(k.cut(m)), tok


def x2_marks(k, c, z):
    m = k.mark()
    for i in range(4):
        k(f"v_mov_b32 {v(z + i)}, -1")
    k(f"s_lshl_b32 s88, {s(sQUAD)}, 14\n s_add_u32 s88, s88, {X2}")
    for e in range(4):
        k(f"buffer_store_dwordx4 {v(z, 4)}, {v(c.go)}, {srd(SWS)}, s88 offen offset:{1024 * e} sc1")
    return vm_items(k.cut(m))


class Gate:
    def __init__(self, inst, n):
        self.n = n
        self.big, self.off = 16384 * (inst // 4), 4 * (inst % 4)

    def arrive(self, k):
        k(f"v_mov_b32 {v(vARR)}, 1\n s_add_u32 {s(sC)}, {s(sAA)}, {self.big + 8192}")
        k(f"buffer_atomic_add {v(vARR)}, {v(vL0)}, {srd(SWS)}, {s(sC)} offen offset:{self.off} sc0 sc1")
        k.own("arr", id(self))

    def publish(self, k):
        last, cont = k.lab("gl"), k.lab("gc")
        k.own("arr", id(self), True)
        k(f"v_cmp_eq_u32 vcc, {self.n - 1}, {v(vARR)}\n s_cbranch_vccnz {last}\n {cont}:")
        cold(k, lambda: k(f"""
        {last}:
        s_add_u32 {s(sC)}, {s(sAA)}, {self.big}
        v_lshlrev_b32 {v(vS0)}, 10, v1
        v_mov_b32 {v(vARR)}, 1
        s_mov_b64 exec, 255
        buffer_store_dword {v(vARR)}, {v(vS0)}, {srd(SWS)}, {s(sC)} offen offset:{self.off} sc1
        s_mov_b64 exec, -1
        s_branch {cont}
        """))

    def poll(self):
        r = sWA + (1 if self.big else 0) * 2
        return Poll(f"buffer_load_dword {v(vPOLL)}, {v(vL7)}, {srd(SWS)}, {s(r)} offen offset:{self.off} sc1", 255)


class Count:
    def __init__(self, inst, n):
        self.n, self.off = n, 4 * (inst % 4)
        self.big = 16384 * (inst // 4)

    def arrive(self, k):
        base = s(sAA)
        if self.big:
            k(f"s_add_u32 {s(sC)}, {s(sAA)}, {self.big}")
            base = s(sC)
        k(f"""
        v_lshlrev_b32 {v(vS0)}, 3, {v(vL7)}
        v_mov_b32 {v(vARR)}, 1
        v_cndmask_b32 {v(vS0)}, {v(vL7)}, {v(vS0)}, {s(sM8, 2)}
        buffer_atomic_add {v(vARR)}, {v(vS0)}, {srd(SWS)}, {base} offen offset:{self.off} sc1
        """)

    def poll(self):
        r = sWA + (2 if self.big else 0)
        return Poll(f"buffer_load_dword {v(vPOLL)}, {v(vL7)}, {srd(SWS)}, {s(r)} offen offset:{self.off} sc1", 255, self.n)


def flags_zero(k, R):
    R = R.fork()
    z = R.get(4, 4)
    o = R.get()
    skip = k.lab("fz")
    k(f"s_cmp_lg_u32 s2, 255\n s_cbranch_scc1 {skip}")
    for i in range(4):
        k(f"v_mov_b32 {v(z + i)}, 0")
    k(f"v_lshlrev_b32 {v(o)}, 4, v0")
    for e in (0, 1, 2, 4, 5, 6):
        tok = k(f"s_mov_b32 s88, {FL + 4096 * e}\n buffer_store_dwordx4 {v(z, 4)}, {v(o)}, {srd(SWS)}, s88 offen sc1")
    k(f"{skip}:")
    return tok


def flags_ready(k, tok):
    skip = k.lab("fr")
    k(f"s_cmp_lg_u32 s2, 255\n s_cbranch_scc1 {skip}\n v_mov_b32 {v(vS0)}, 1")
    k.wait(tok)
    k(f"""
    s_barrier
    s_mov_b64 exec, 1
    global_store_dword {v(vARR)}, {v(vS0)}, {s(P_DBG, 2)} sc1
    s_mov_b64 exec, -1
    {skip}:
    """)


class Poll:
    def __init__(self, load, mask, want=1):
        self.load, self.mask, self.want = load, mask, want

    def issue(self, k):
        self.tok = k(self.load)
        k.own("poll", id(self))

    def check(self, k):
        spin, loop, cont = k.lab("ps"), k.lab("pl"), k.lab("pc")
        k.own("poll", id(self), True)
        test = f"v_cmp_gt_u32 vcc, {self.want}, {v(vPOLL)}\n s_and_b64 vcc, vcc, {s(sM8, 2)}\n"
        if self.mask != 255:
            test += f"s_and_b64 vcc, vcc, {self.mask}\n"
        k(test + f"s_cbranch_scc1 {spin}\n {cont}:")
        cold(k, lambda: k(f"""
        {spin}:
        s_mov_b32 {s(sC + 2)}, {SPIN_MAX}
        {loop}:
        {self.load}
        s_waitcnt vmcnt(0)
        s_sub_u32 {s(sC + 2)}, {s(sC + 2)}, 1
        s_cbranch_scc1 {cont}
        {test}
        s_cbranch_scc1 {loop}
        s_branch {cont}
        """))

    def wait(self, k):
        self.issue(k)
        self.check(k)


def poll_ready():
    return Poll(f"global_load_dword {v(vPOLL)}, {v(vARR)}, {s(P_DBG, 2)} sc1", 1)


def st1_mark(k, R):
    T = R.fork()
    z, o = T.get(), T.get()
    k(f"""
    v_mov_b32 {v(z)}, {OOB}
    v_lshlrev_b32 {v(o)}, 2, v0
    v_cmp_gt_u32 vcc, 16, v0
    v_cndmask_b32 {v(o)}, {v(z)}, {v(o)}, vcc
    v_mov_b32 {v(z)}, -1
    s_lshl_b32 {s(97)}, s2, 6
    s_add_u32 {s(97)}, {s(97)}, {ST + ST_SZ}
    """)
    return k(f"buffer_store_dword {v(z)}, {v(o)}, {srd(SWS)}, {s(97)} offen sc1")


def st1_check(k, q, st, chunk):
    entry = k.lab("sl")
    assert q.st_tok[1:] == (1, chunk)
    tok = q.st_tok
    k.order(tok[0])
    k(f"""
    {entry}:
    v_max3_u32 {v(vS0)}, {v(st)}, {v(st + 1)}, {v(st + 2)}
    v_max3_u32 {v(vS0)}, {v(vS0)}, {v(st + 3)}, {v(st + 4)}
    v_max_u32 {v(vS0)}, {v(vS0)}, {v(st + 5)}
    v_cmp_eq_u32 vcc, -1, {v(vS0)}
    """)
    retry(k, entry, lambda: q_stats_load(k, q, st, 1, chunk, "sc1"), "st", count=9 + chunk)
    q.st_tok = tok


def x_touch(k, R, chunk):
    d, e = R.get(), R.get()
    t = sT
    k(f"""
    s_mul_i32 {s(t)}, {s(sI8)}, 18
    s_lshl_b32 {s(t + 1)}, {s(sBLK)}, 7
    s_add_u32 {s(t)}, {s(t)}, {s(t + 1)}
    s_add_u32 {s(t)}, {s(t)}, {s(sPAR)}
    s_add_u32 {s(t)}, {s(t)}, {1024 * chunk - 16}
    s_max_i32 {s(t)}, {s(t)}, 0
    s_mul_i32 {s(t)}, {s(t)}, 1280
    v_lshrrev_b32 {v(d)}, 1, v0
    v_min_u32 {v(d)}, 89, {v(d)}
    v_mul_u32_u24 {v(e)}, 6554, {v(d)}
    v_lshrrev_b32 {v(e)}, 16, {v(e)}
    v_mul_u32_u24 {v(e)}, 1280, {v(e)}
    v_lshl_add_u32 {v(d)}, {v(d)}, 7, {v(e)}
    buffer_load_dword {v(d)}, {v(d)}, {srd(SX)}, {s(t)} offen
    """)


def w_touch(k, R):
    t = sT
    m = k.mark()
    k(f"""
    s_lshr_b32 {s(t)}, s2, 3
    s_mul_i32 {s(t)}, {s(t)}, 3840
    s_and_b32 {s(t + 1)}, s2, 1
    s_mul_i32 {s(t + 1)}, {s(t + 1)}, 640
    s_add_u32 s88, {s(t)}, {s(t + 1)}
    """)
    ld = []
    for e in range(2):
        d, q, r = R.get(), R.get(), R.get()
        if e:
            k(f"v_lshrrev_b32 {v(d)}, 2, v0\n v_add_u32 {v(d)}, 256, {v(d)}\n v_min_u32 {v(d)}, 299, {v(d)}")
        else:
            k(f"v_mov_b32 {v(d)}, v0")
        k(f"""
        v_mul_u32_u24 {v(q)}, 13108, {v(d)}
        v_lshrrev_b32 {v(q)}, 16, {v(q)}
        v_mul_u32_u24 {v(r)}, 4370, {v(d)}
        v_lshrrev_b32 {v(r)}, 16, {v(r)}
        v_mul_u32_u24 {v(q)}, 640, {v(q)}
        v_mul_u32_u24 {v(r)}, {31 * 3840}, {v(r)}
        v_lshlrev_b32 {v(d)}, 7, {v(d)}
        v_add3_u32 {v(d)}, {v(d)}, {v(q)}, {v(r)}
        """)
        ld.append(f"buffer_load_dword {v(d)}, {v(d)}, {srd(SW)}, s88 offen")
    return k.cut(m), ld


def code_prefetch(k, R, start, end):
    d = R.get()
    k(f"""
    s_bfe_u32 {s(sC)}, s2, 0x40003
    s_lshl_b32 {s(sC)}, {s(sC)}, 13
    v_lshrrev_b32 {v(d)}, 2, v0
    v_lshl_add_u32 {v(d)}, {v(d)}, 7, {s(sC)}
    v_min_u32 {v(d)}, {end}-{start}, {v(d)}
    global_load_dword {v(d)}, {v(d)}, s[42:43]
    """)


def page_touch(k, R):
    d = R.get(4)
    skip = k.lab("pt")
    k(f"""
    s_cmp_lg_u32 {s(sWAVE)}, 2
    s_cbranch_scc1 {skip}
    v_lshlrev_b32 {v(d)}, 18, v1
    v_add_u32 {v(d + 1)}, {64 << 18}, {v(d)}
    buffer_load_dword {v(d + 2)}, {v(d)}, {srd(SWS)}, 0 offen sc1
    buffer_load_dword {v(d + 3)}, {v(d)}, {srd(SOUT)}, 0 offen sc1
    buffer_load_dword {v(d + 1)}, {v(d + 1)}, {srd(SWS)}, 0 offen sc1
    {skip}:
    """)


def code_prefetch2(k, d, label, end="L_last", start="L_start"):
    k(f"""
    s_lshl_b32 {s(sC)}, {s(sWAVE)}, 13
    s_add_u32 {s(sC)}, {s(sC)}, {label}-{start}
    v_lshl_add_u32 {v(d)}, v1, 7, {s(sC)}
    v_min_u32 {v(d)}, {end}-{start}, {v(d)}
    global_load_dword {v(d)}, {v(d)}, s[42:43]
    """)
```

```python
import sys, json
from tasks import *
NAME = "interleave_layers__sliding_local_dilated__ssm_conv_s4d__prompt"
HEAD = open(f"/code/{NAME}.s.ref").read().split("; Override")[0]
SC = "sc1"
OPT = {}
OF, RS = 216, 208


def atom(k, fn):
    return [grab(k, fn)[0]]


def each(k, fn):
    return grab(k, fn)[0]


def if_conv(k, fn, other=None):
    no, end = k.lab("nc"), k.lab("ec")
    k(f"s_cmp_ge_u32 s2, 160\n s_cbranch_scc1 {no}")
    fn()
    if other is not None:
        k(f"s_branch {end}\n {no}:")
        other()
        k(f"{end}:")
    else:
        k(f"{no}:")


def if_spare(k, fn):
    no = k.lab("ns")
    k(f"s_cmp_lt_u32 s2, 160\n s_cbranch_scc1 {no}")
    fn()
    k(f"{no}:")


def mark_epoch(k, base, total, gate):
    k.put(flat(marks(k, 100, base, total)[0]))
    k("s_waitcnt vmcnt(0)\n s_barrier")
    gate.arrive(k)
    gate.publish(k)


def if_s2(k, fn):
    skip = k.lab("s2")
    k(f"s_sub_u32 {s(sC + 3)}, s2, 160\n s_cmp_ge_u32 {s(sC + 3)}, 64\n s_cbranch_scc1 {skip}")
    fn()
    k(f"{skip}:")


def s2_begin(k, chunk):
    k(f"s_sub_u32 s3, s2, 160\n s_and_b32 s3, s3, 63\n s_add_u32 s3, s3, {64 * chunk}")
    s2_load(k, OF, 3, SC)


def s2_end(k):
    if_s2(k, lambda: s2_finish(k, OF, 3, KL0, SC))


CDX, CDS = (176, 180), 184
OAD = [200, 201, 202, 203, 204, 205, 206, 207, 214, 215]
HELD = {i: 144 + 4 * i for i in range(8)}
G_P, G_M1, G_O, G_M3, G_C0, G_C1 = Count(0, 32), Count(6, 32), Count(2, 32), Gate(3, 12), Gate(4, 20), Gate(5, 20)


def delayed(lst, n):
    p = next(i for i, e in enumerate(lst) if e.kind == "pseudo")
    return lst[:p] + [n] + lst[p:]


def conv_phase(k, c, x, R, layer, gt):
    R = R.fork()
    xf, ds1 = R.get(16, 4), R.get(16, 4)
    bufs = [R.get(16, 4) for _ in range(6)]
    accs = [ds1, bufs[0], bufs[1], bufs[0], bufs[2], bufs[3], bufs[4], bufs[5]]
    tmp = R.get(4)
    pool = [R.get(4, 4) for _ in range(9)]
    dx1 = (R.get(4, 4), R.get(4, 4))
    scr = Regs(bufs[0], bufs[2])
    held = {i: bufs[2] + 4 * i for i in range(16)}
    assert held[0] == HELD[0] and held[8] == CDX[0]
    c_check(k, c, tmp, CDX, CDS, layer, 0, SC)
    stamp(k, "chk0")
    c_norm(k, c, tmp, xf, CDX, CDS, 0)
    k("s_waitcnt lgkmcnt(0)\n s_barrier")
    stamp(k, "norm0")
    m = c_mfma(k, c, tri_ops(0) + cross_ops(), accs, pool, range(8), 4, held, 40)
    hs = [c_horner(k, c, accs[t], t, tmp) for t in range(4)]
    after = {1: each(k, lambda: [k_frag(k, c, held[i], i) for i in range(8, 16)]), 4: hs[0], 12: hs[1], 24: hs[2]}
    mtok = None
    vm = {}
    if layer == 0:
        mk2 = x2_marks(k, c, dx1[0])
        mtok = mk2[-1][-1].tok
        m0_, m1_ = OPT.get('mkp', (5, 6))
        vm.update({m0_ + m1_ * i: [e] for i, e in enumerate(mk2)})
    vm[OPT.get("cl1", 40)] = vm_items(each(k, lambda: c_load(k, c, dx1, ds1, layer, 1, SC)))
    q = list(hs[3])
    ytok = hs[3][-1].tok
    q += [3] + atom(k, lambda: (k.wait(ytok, mtok), k("s_barrier")))
    co = delayed(each(k, lambda: c_out(k, c, scr, xf, layer, 0, SC)), 4)
    if layer == 0:
        arr = atom(k, lambda: G_C0.arrive(k))
        a0 = OPT.get("arr0", 2)
        if a0:
            ps = [i for i, e in enumerate(co) if not isinstance(e, int) and e.mn.startswith("buffer_store")]
            i0 = ps[0] if a0 == 1 else next(i for i, e in enumerate(co) if isinstance(e, int))
            co[i0:i0] = arr
        else:
            co += arr
    q += co
    held1 = {i: bufs[0] + 4 * i for i in range(8)}
    q += each(k, lambda: [k_frag(k, c, held1[i], i) for i in range(8)])
    after[40] = q
    q = atom(k, lambda: c_check(k, c, tmp, dx1, ds1, layer, 1, SC))
    q += each(k, lambda: c_norm(k, c, tmp, xf, dx1, ds1, 1))
    pub = OPT.get("pub", 0)
    if layer == 0:
        if not pub:
            q += atom(k, lambda: G_C0.publish(k))
        q += each(k, lambda: x_bases(k, x, 0))
    after[OPT.get("cn1", 70)] = q
    m, rest = weave(m, after, vm=vm)
    pos = {id(e): p for p, e in enumerate(m)}
    mf = [p for p, e in enumerate(m) if e.kind == "mfma"]
    assert pos[id(hs[1][-1])] < mf[24] and pos[id(after[1][-1])] < mf[12]
    if OPT.get("cst") and layer == OPT["cst"] - 1:
        pts = (1, 20, 40, 56, 69, 75, 90)
        sts = [each(k, lambda: stamp(k, f"m{n}")) for n in pts]
        for n, e in reversed(list(zip(pts, sts))):
            m[mf[n]:mf[n]] = e
    k.put(m + rest)
    k("s_waitcnt lgkmcnt(0)\n s_barrier")
    stamp(k, "c0x")
    m = c_mfma(k, c, tri_ops(4), accs, pool + list(dx1), [], 4, held1)
    hs = [c_horner(k, c, accs[4 + t], t, tmp) for t in range(4)]
    out_regs = Regs(accs[4], accs[6])
    q = list(hs[1])
    ytok = hs[1][-1].tok
    o0 = each(k, lambda: c_out(k, c, out_regs, xf, layer, 1, SC, (0,)))
    p = next(i for i, e in enumerate(o0) if e.kind == "pseudo")
    p_c = G_C0.poll()
    ng = OPT.get("ng", 2)
    early = layer == 0 and OPT.get("e1", 1)
    vm = {}
    if layer == 0:
        vm = {OPT.get("pc0", 2 if early else 26): atom(k, lambda: p_c.issue(k))}
    if early:
        issue = vm.pop(OPT.get("pc0", 2))
        dm = []
        for G in range(ng):
            items, gt[G] = x_dma_items(k, x, G, SC)
            dm += items
        q = issue + q + [2] + atom(k, lambda: (k.wait(ytok), p_c.check(k), k("s_barrier"))) + o0[:p]
        nd = OPT.get("nd", 5)
        q += dm[:nd]
        after = {4: hs[0], 12: q, 25: hs[2] + o0[p:] + dm[nd:]}
    else:
        q += [2] + atom(k, lambda: (k.wait(ytok), k("s_barrier"))) + o0[:p]
        after = {4: hs[0], 12: q, 25: hs[2] + o0[p:]}
    if layer == 0 and pub:
        pb = atom(k, lambda: G_C0.publish(k))
        if pub in after:
            after[pub] = pb + after[pub]
        else:
            after[pub] = pb
    m, rest = weave(m, after, vm=vm)
    k.put(m + rest + hs[3])
    k("s_waitcnt lgkmcnt(0)")
    if layer == 0 and not early:
        p_c.check(k)
    k("s_barrier")
    stamp(k, "c1")
    body = each(k, lambda: c_out(k, c, out_regs, xf, layer, 1, SC, (1,)))
    if layer == 0 and not early:
        items, gt[0] = x_dma_items(k, x, 0, SC)
        k.put(body[:4] + flat(items) + body[4:])
        G_C1.arrive(k)
        gt[1] = x_dma(k, x, 1, SC)
    elif layer == 0:
        k.put(body)
        G_C1.arrive(k)
    else:
        k.put(body)
    stamp(k, "out1")


def main_kernel():
    k = Kernel(NAME + "_kernel")
    k.lab = lambda p="L", c=[0]: (c.__setitem__(0, c[0] + 1), f"{p}_{c[0]}")[1]
    end = "L_end"
    k("s_getpc_b64 s[42:43]\n L_start:")
    stamp(k, "first")
    box = {}
    T = Regs(84)

    def early():
        code_prefetch(k, Regs(159), "L_start", "L_last")
        roles(k)
        box["st"] = prep_issue(k, T, KL0)
    prologue(k, 256, end, early)
    stamp(k, "start")
    R = Regs(8)
    st = box["st"]
    PRM, KACC, XS = 232, 216, 120
    ztok = flags_zero(k, Regs(120))
    kgen_issue(k, PRM, 0)
    st["toks"] = [k(l) for l in st["ld"]]
    prep_addr(k, T, KL0, st)
    assert T.n <= 120
    if OPT.get("t0", 1):
        x_touch(k, Regs(204), 0)
    sync_setup(k)
    const_init(k, Regs(140))
    q = q_setup(k, R)
    o = o_setup(k, R)
    c = c_setup(k, R)
    XR = R.fork()
    x = x_addr(k, R, 0, Regs(140))
    assert R.n == 80, R.n
    g = q_regs(R.fork())
    A = Regs(g.acc)
    wa = w_addr(k, Regs(200))
    x_bases(k, x, 0)
    k(f"s_mov_b32 {s(sTRY)}, 0x10000\n s_mov_b32 {s(sREDO)}, 0x1000")
    stamp(k, "setup")
    NW0 = OPT.get("nw0", 14)
    gt = {}

    def E(fn):
        return lambda: each(k, fn)

    def x0(dst, own=False):
        out = []
        for G in range(5):
            items, dst[G] = x_dma_items(k, x, G, "", None, own)
            out += items
        return out

    def small():
        return vm_items(each(k, lambda: (zero_sa(k, Regs(140), SC), st1_mark(k, Regs(142)))))

    def w_store():
        p_rdy = poll_ready()
        tok = prep_finish(k, st, SC)
        p_rdy.issue(k)
        stamp(k, "wst")

        def arrive():
            k.wait(tok)
            p_rdy.check(k)
            k("s_barrier")
            G_P.arrive(k)
            stamp(k, "arrP")
        return arrive

    def start_conv():
        items = x0(gt, True)
        b0, b1, b2 = OPT.get("kd", (0, 0, 12))
        k.put(flat(items[:b0]))

        def f():
            kg = KGen(k, Regs(172, 196), KACC, PRM, AT0, KL0, Regs(242))
            kg.setup(0)
            kg.chains()
            kg.mfmas(True, each(k, lambda: kg.setup(1)), items[b0:b1])
            kg.chains()
            kg.mfmas(False, each(k, lambda: kg.setup(2)), items[b1:b2])
            kg.chains()
            kg.mfmas(False, [], items[b2:])
        body = each(k, f)
        n0, n1, n2, n3 = OPT.get("kp", (120, 300, 660, 740))
        mk = marks(k, 144, MK0, 2 * XSZ, 0)[0]
        p_p = G_P.poll()

        def safe(n):
            while any(("s", "exec") in e.defs for e in body[max(n - 2, 0):n + 1]):
                n += 1
            return n

        def seg(lo, hi, it):
            lo, hi = safe(lo), safe(hi)
            k.put(spread(body[lo:hi], it, max((hi - lo) // (len(it) + 1), 1)))
        seg(0, n0, [])
        arrive = w_store()
        seg(n0, n1, atom(k, lambda: kgen_issue(k, PRM, 1)) + atom(k, lambda: rows_load(k, Regs(XS))) + small())
        arrive()
        seg(n1, n2 - 60, mk)
        box["stok"] = rows_stats(k, XS, SC)
        seg(n2 - 60, n2, [])
        p_p.issue(k)
        seg(n2, n3, [])
        stamp(k, "preP")
        p_p.check(k)
        k("s_barrier")
        if OPT.get("m1", 0):
            G_M1.arrive(k)
        stamp(k, "wP")
        seg(n3, len(body), vm_items(each(k, lambda: w_load(k, wa, 0, NW0, SC))))

    def start_other():
        flags_ready(k, ztok)
        items = x0({})
        mk = marks(k, 144, MK0, 2 * XSZ, 0)[0]
        wo = [wo_prep_issue(k, Regs(160 + 20 * r), AT0 + 8192 * r, r) for r in range(2)]
        for i in range(16):
            k(f"v_mov_b32 {v(KACC + i)}, 0")
        arrive = w_store()
        rows_load(k, Regs(XS))
        arrive()
        for w_ in wo:
            wo_prep_finish(k, w_, SC)
        if OPT.get("so", 2) == 0:
            k.put(flat(items + small() + mk))
            last = rows_stats(k, XS, SC)
        elif OPT.get("so", 2) == 1:
            last = rows_stats(k, XS, SC)
            tail = small() + mk
            last = [e for e in flat(tail) if e.tok is not None][-1].tok
            k.put(flat(tail + items))
        else:
            last = rows_stats(k, XS, SC)
            tail = small() + mk
            last = [e for e in flat(tail) if e.tok is not None][-1].tok
            k.put(flat(items[:10] + tail + items[10:]))
        stamp(k, "mk1")
        k.wait(last)
        if OPT.get("m1", 0):
            k("s_barrier")
            G_M1.arrive(k)
        G_P.poll().wait(k)
        k("s_barrier")
        w_load(k, wa, 0, NW0, SC)
    if_conv(k, start_conv, start_other)
    if OPT.get("t1", 1):
        x_touch(k, Regs(206), 1)
    stamp(k, "kg1")
    for layer in range(2):
        nxt = {}
        sc = SC if layer else ""

        def dma(dst, *Gs):
            def f():
                out = []
                for G in Gs:
                    items, dst[G] = x_dma_items(k, x, G, sc)
                    out += items
                return out
            return f

        def both(*fs):
            return lambda: [e for f in fs for e in f()]

        def redo(entry, chunk, ngroups):
            def reload():
                k("s_waitcnt vmcnt(0) lgkmcnt(0)\n s_barrier")
                x_bases(k, x, chunk)
                for G in range(ngroups):
                    x_dma(k, x, G, SC)
            return lambda: retry(k, entry, reload, "g", sREDO, count=11 + chunk, masked=False)
        stats = lambda ch: E(lambda: q_stats_load(k, q, g.st, layer, ch, SC))
        if layer == 0:
            p_m = G_M1.poll()
            side = {0: both(E(lambda: w_load(k, wa, NW0, 36, SC)), lambda: atom(k, lambda: p_m.issue(k)),
                            E(lambda: w_load(k, wa, 36, 40, SC)), E(lambda: x_bases(k, x, 1))),
                    30: both(stats(0), dma(nxt, 0, 1))}
            if NW0 >= 16:
                side.update({14: dma(nxt, 0), 30: both(stats(0), dma(nxt, 1))})
            pre = {-1: lambda: k.wait(box["stok"]), "first": lambda: G_M1.arrive(k), 3: lambda: p_m.check(k)}
            if OPT.get("m1", 0):
                pre = {3: lambda: p_m.check(k)}
            left = q_gemm(k, q, x, g, gt, True, pre, side, (0, 1, 2, 3), False,
                          {0: lambda: each(k, lambda: at_zero(k, Regs(RS))) + k_expand(k, KACC, PRM + 9, 242, KL0)})
            wol = vm_items(each(k, lambda: wo_load(k, o, SC)))
            rd = None
        else:
            entry = k.lab("ge")
            k(f"{entry}:")

            p_m, p_c = G_M3.poll(), G_C1.poll()
            pre = {0: lambda: G_C1.publish(k), 1: lambda: p_m.check(k),
                   3: lambda: (st1_check(k, q, g.st, 0), p_c.check(k))}
            n0 = OPT.get("ng", 2) if OPT.get("e1", 1) else 2
            side = {0: both(dma(gt, *range(n0, 3)), lambda: atom(k, lambda: p_m.issue(k)), dma(gt, *range(max(n0, 3), 5)), E(lambda: x_bases(k, x, 1))),
                    20: both(stats(0), lambda: atom(k, lambda: p_c.issue(k))),
                    30: both(E(lambda: s2_begin(k, 1)), dma(nxt, 0, 1))}
            left = q_gemm(k, q, x, g, gt, False, pre, side, (0, 1, 2, 3), True, {0: E(lambda: at_zero(k, Regs(RS)))})
            rd = redo(entry, 0, n0)
        stamp(k, "g0")
        left += vm_items(dma(nxt, 2)())
        if layer == 0:
            left += wol[:OPT.get("woa", 5)]
        if layer == 1:
            s2_end(k)
        k.put(spread(each(k, lambda: q_attn(k, q, A, layer, 0, SC, rd)), left, 8, 12))
        stamp(k, "a0")
        pre = {}
        side = {OPT.get("ol0", 26): E(lambda: (o_load(k, o, OF, layer, 0, SC), o_resid_load(k, o, RS, layer, 0, SC)))}
        if layer == 0:
            side[0] = both(dma(nxt, 3, 4), stats(1), lambda: wol[OPT.get("woa", 5):])
        else:
            entry = k.lab("ge")
            k(f"{entry}:")
            side[0] = dma(nxt, 3, 4)
            side[18] = stats(1)
            pre[3] = lambda: st1_check(k, q, g.st, 1)
            rd = redo(entry, 1, 3)
        alu = {10: E(lambda: (layer == 0 and o_scalars(k), o_addr(k, o, OAD, 199)))}
        left = q_gemm(k, q, x, g, nxt, False, pre, side, (0, 1, 2, 3), layer == 1, alu)
        stamp(k, "g1")
        k.put(spread(each(k, lambda: q_attn(k, q, A, layer, 1, SC, rd)), left, 8, 12))
        stamp(k, "a1")
        o_compute(k, o, A, OF, RS, layer, 0, SC, (),
                  each(k, lambda: (o_load(k, o, OF, layer, 1, SC), o_resid_load(k, o, RS, layer, 1, SC))),
                  each(k, lambda: [k_frag(k, c, HELD[i], i) for i in range(8)]))
        stamp(k, "o0")
        c_zero(k, c, Regs(176))
        if layer == 0:
            x = x_addr(k, XR.fork(), 1, Regs(176))
        cl = each(k, lambda: c_load(k, c, CDX, CDS, layer, 0, SC))
        if OPT.get("clate", 1):
            o_compute(k, o, A, OF, RS, layer, 1, SC, (), cl)
        else:
            o_compute(k, o, A, OF, RS, layer, 1, SC, cl)
        if layer == 0 and OPT.get("go", 1):
            G_O.arrive(k)
        stamp(k, "o1")
        gt = {}

        def no_conv():
            if layer == 0:
                if OPT.get("go", 1):
                    G_O.poll().wait(k)
                if OPT.get("slp"):
                    k(f"s_sleep {OPT['slp']}")
                mark_epoch(k, MK1 + XSZ, 2 * XSZ, G_M3)
                stamp(k, "mk3")
                G_C0.poll().wait(k)
                k("s_barrier")
                stamp(k, "hint0")
                s2_begin(k, 0)
                x_bases(k, x, 0)
                n0 = OPT.get("ng", 2) if OPT.get("e1", 1) else 2
                tk = [x_dma(k, x, G, SC) for G in range(2)]
                s2_end(k)
                tk += [x_dma(k, x, G, SC) for G in range(2, n0)]
                for G in range(n0):
                    gt[G] = (gt[G], tk[G])
        if_conv(k, lambda: conv_phase(k, c, x, R, layer, gt), no_conv)
        stamp(k, "cend")
    stamp_flush(k, 0)
    k(f"{end}:\n s_endpgm")
    k.put(k.cold)
    k("L_last:\n s_endpgm")
    return k


def build(path):
    k = main_kernel()
    t, d = kernel_text(k, 256, 256)
    print("regs", k.maxregs(), "instrs", len(k.ins), file=sys.stderr)
    txt = HEAD
    if STAMPS["on"]:
        txt += "; stamps:" + json.dumps(["cyc" if STAMPS.get("op") == "s_memtime" else "st", k.stamps]) + "\n"
    txt += "; @launch grid=(256,1,1) block=(256,1,1) lds=163840\n"
    txt += '.amdgcn_target "amdgcn-amd-amdhsa--gfx950"\n' + t + d
    open(path, "w").write(txt)


if __name__ == "__main__":
    mode = sys.argv[1] if len(sys.argv) > 1 else ""
    STAMPS["on"] = mode in ("st", "cyc")
    STAMPS["o"] = "o" in sys.argv[2:]
    STAMPS["r"] = "r" in sys.argv[2:]
    import tasks
    for a_ in sys.argv[2:]:
        if a_.startswith("room="):
            tasks.ROOM[0] = int(a_[5:])
        if "=" in a_:
            OPT[a_.split("=")[0]] = eval(a_.split("=")[1])
    STAMPS["o2"] = OPT.get("o2", 0)
    if "gst" in OPT:
        STAMPS["gst"] = OPT["gst"]
    import tasks as _t
    if "back" in OPT:
        _t.BACKOFF[0] = OPT["back"]
    if mode == "cyc":
        STAMPS["op"] = "s_memtime"
    build("v2.s")
    json.dump(STAMPS["names"], open("stamps.json", "w"))
```

```python
import sys, re, collections
import numpy as np
from asmlib import Ins
M = 0xFFFFFFFF
def run(path, wg, wave, verbose=False):
    lines = [l.strip() for l in open(path)]
    i0 = next(i for i, l in enumerate(lines) if l.startswith("interleave") and l.endswith(":"))
    prog = [l for l in lines[i0 + 1:] if l and not l.startswith((";", "."))]
    labels = {l[:-1]: n for n, l in enumerate(prog) if l.endswith(":")}
    S = {"s2": wg, "exec": (1 << 64) - 1, "scc": 0, "m0": None}
    V = {"v0": np.arange(64, dtype=np.int64) + 64 * wave}
    def sval(o):
        if o in S: return S[o]
        if o == "vcc": return S.get("vcc")
        m = re.match(r"s\[(\d+):(\d+)\]$", o)
        if m:
            lo, hi = S.get("s" + m.group(1)), S.get("s" + m.group(2))
            return None if lo is None or hi is None else lo | (hi << 32)
        if re.match(r"s\d+$", o): return None
        try: return int(o, 0) & M if not o.startswith("-") else int(o, 0) & M
        except ValueError: return None
    def sval64(o):
        if o == "-1": return (1 << 64) - 1
        if o == "exec": return S["exec"]
        return sval(o)
    def val(o):
        if re.match(r"v\d+$", o): return V.get(o)
        x = sval(o)
        return None if x is None else np.full(64, x, dtype=np.int64)
    def sset(o, x):
        m = re.match(r"s\[(\d+):(\d+)\]$", o)
        if m:
            S["s" + m.group(1)] = None if x is None else x & M
            S["s" + m.group(2)] = None if x is None else (x >> 32) & M
        elif o == "exec_lo": S["exec"] = (S["exec"] & ~M) | x
        elif o == "exec_hi": S["exec"] = (S["exec"] & M) | (x << 32)
        else: S[o] = x
    def vset(o, x):
        ex = S["exec"]
        if x is not None: x = x & M
        if ex != (1 << 64) - 1 and x is not None:
            old = V.get(o)
            if old is None: old = np.zeros(64, dtype=np.int64)
            mk = np.array([(ex >> l) & 1 for l in range(64)], dtype=bool)
            x = np.where(mk, x, old)
        V[o] = x
    G128 = [[0,1,2,3,12,13,14,15,20,21,22,23,24,25,26,27],[4,5,6,7,8,9,10,11,16,17,18,19,28,29,30,31]]
    G128 += [[l + 32 for l in g] for g in G128]
    def groups(mn):
        if mn == "ds_read_b128": return G128, 16, 64
        if mn in ("ds_read_b64", "ds_read_b64_tr_b16"): return [list(range(32)), list(range(32, 64))], 8, 64
        if mn in ("ds_read_b32", "ds_read2st64_b32", "ds_write_b32", "ds_write_addtid_b32"): return [list(range(32)), list(range(32, 64))], 4, 32
        if mn == "ds_write_b64": return [list(range(16 * g, 16 * g + 16)) for g in range(4)], 8, 32
        if mn == "ds_write_b128": return [list(range(8 * g, 8 * g + 8)) for g in range(8)], 16, 32
    res = collections.OrderedDict()
    pc, nm, steps = 0, 0, 0
    while pc < len(prog) and steps < 200000:
        steps += 1
        l = prog[pc]; pc += 1
        if l.endswith(":"): continue
        i = Ins(l); mn = i.mn.replace("_e64", ""); o = i.ops
        if mn == "s_endpgm": break
        if mn == "s_branch": pc = labels[o[0]]; continue
        if mn == "s_cbranch_scc1":
            if S["scc"]: pc = labels[o[0]]
            continue
        if mn == "s_cbranch_scc0":
            if not S["scc"]: pc = labels[o[0]]
            continue
        if mn.startswith("s_cbranch"): continue
        if mn.startswith("v_mfma"):
            nm += 1
        if mn.startswith("s_cmp"):
            a, b = sval(o[0]), sval(o[1])
            if a is None or b is None: S["scc"] = 0; continue
            S["scc"] = int({"ge": a >= b, "lt": a < b, "eq": a == b, "lg": a != b, "le": a <= b}[mn.split("_")[2]]); continue
        if mn.startswith("s_"):
            f = {"s_mov_b32": lambda a: a, "s_add_u32": lambda a, b: a + b, "s_sub_u32": lambda a, b: a - b, "s_mul_i32": lambda a, b: a * b,
                 "s_lshl_b32": lambda a, b: a << b, "s_lshr_b32": lambda a, b: a >> b, "s_and_b32": lambda a, b: a & b, "s_or_b32": lambda a, b: a | b,
                 "s_min_u32": min, "s_bfe_u32": lambda a, b: (a >> (b & 31)) & ((1 << ((b >> 16) & 127)) - 1),
                 "s_max_i32": lambda a, b: max(a - (1 << 32) * (a >> 31), b - (1 << 32) * (b >> 31))}.get(mn)
            if mn == "s_mov_b64": sset(o[0], sval64(o[1])); continue
            if mn == "s_cselect_b32": sset(o[0], sval(o[1]) if S["scc"] else sval(o[2])); continue
            if mn == "s_cselect_b64": sset(o[0], sval64(o[1]) if S["scc"] else sval64(o[2])); continue
            if mn in ("s_and_b64", "s_or_b64"):
                a, b = sval64(o[1]), sval64(o[2]); r = None if a is None or b is None else (a & b if mn == "s_and_b64" else a | b)
                sset(o[0], r); S["scc"] = 0; continue
            if f:
                a = [sval(x) for x in o[1:]]
                r = None if any(x is None for x in a) else f(*a) & M
                sset(o[0], r)
                if mn == "s_sub_u32": S["scc"] = int(a[0] is not None and a[1] is not None and a[0] < a[1])
                elif mn in ("s_add_u32",): S["scc"] = 0
            elif i.defs and not mn.startswith(("s_waitcnt", "s_nop", "s_barrier")):
                for r_ in i.defs:
                    if r_[0] == "s": S["s%s" % r_[1] if isinstance(r_[1], int) else r_[1]] = None
            continue
        if mn.startswith("ds_"):
            g = groups(mn)
            off = re.search(r"offset:(\d+)", i.mods); off = int(off.group(1)) if off else 0
            if mn == "ds_write_addtid_b32":
                a = None if S["m0"] is None else np.arange(64) * 4 + (S["m0"] & 0xFFFF)
            else:
                a = V.get(o[1] if mn.startswith("ds_read") else o[0])
            key = (mn, nm)
            if a is None:
                res[len(res)] = (nm, mn, l, None)
            else:
                offs = [off]
                if mn == "ds_read2st64_b32":
                    offs = [int(x) * 256 for x in re.findall(r"offset[01]:(\d+)", i.mods)]
                extra = 0
                for off in offs:
                    grp, width, nb = g
                    for lanes in grp:
                        lanes = [x for x in lanes if (S["exec"] >> x) & 1 or mn == "ds_read_b64_tr_b16"]
                        banks = collections.defaultdict(set)
                        for x in lanes:
                            ad = int(a[x]) + off
                            for d in range(width // 4):
                                banks[((ad // 4) + d) % nb].add((ad // 4) + d)
                        extra += max([len(s_) for s_ in banks.values()] + [1]) - 1
                res[len(res)] = (nm, mn, l, extra)
            for r_ in i.defs: V["%s%d" % r_] = None
            continue
        if mn.startswith("v_"):
            d = o[0]
            a = [val(x) for x in o[1:]]
            r = None
            ok = lambda n: all(x is not None for x in a[:n])
            if mn == "v_mov_b32" and ok(1) and not i.dpp: r = a[0]
            elif mn == "v_and_b32" and ok(2): r = a[0] & a[1]
            elif mn == "v_or_b32" and ok(2): r = a[0] | a[1]
            elif mn == "v_xor_b32" and ok(2): r = a[0] ^ a[1]
            elif mn == "v_add_u32" and ok(2): r = a[0] + a[1]
            elif mn == "v_sub_u32" and ok(2): r = a[0] - a[1]
            elif mn == "v_subrev_u32" and ok(2): r = a[1] - a[0]
            elif mn == "v_lshlrev_b32" and ok(2): r = a[1] << a[0]
            elif mn == "v_lshrrev_b32" and ok(2): r = a[1] >> a[0]
            elif mn == "v_mul_u32_u24" and ok(2): r = (a[0] & 0xFFFFFF) * (a[1] & 0xFFFFFF)
            elif mn == "v_lshl_add_u32" and ok(3): r = (a[0] << a[1]) + a[2]
            elif mn == "v_add3_u32" and ok(3): r = a[0] + a[1] + a[2]
            elif mn == "v_bfe_u32" and ok(3): r = (a[0] >> a[1]) & ((1 << a[2]) - 1)
            elif mn == "v_min_u32" and ok(2): r = np.minimum(a[0], a[1])
            elif mn == "v_mad_i32_i24" and ok(3): r = a[0] * a[1] + a[2]
            elif mn.startswith("v_cmp_") and mn.endswith(("u32", "i32")):
                if ok(2):
                    x, y = a[0], a[1]
                    if mn.endswith("i32"): x = np.where(x >> 31, x - (1 << 32), x); y = np.where(y >> 31, y - (1 << 32), y)
                    c = {"eq": x == y, "gt": x > y, "lt": x < y, "ne": x != y, "le": x <= y}[mn.split("_")[2]]
                    sset(d, sum(1 << n for n in range(64) if c[n]) & S["exec"])
                else: sset(d, None)
                continue
            elif mn.startswith("v_cmp"): sset(d, None); continue
            elif mn == "v_cndmask_b32":
                c = sval64(o[3]) if len(o) > 3 else S.get("vcc")
                if ok(2) and c is not None:
                    mk = np.array([(c >> n) & 1 for n in range(64)], dtype=bool); r = np.where(mk, a[1], a[0])
            elif mn == "v_readfirstlane_b32":
                S[d] = None if a[0] is None else int(a[0][0]); continue
            elif mn in ("v_readlane_b32",): S[d] = None; continue
            if mn.startswith("v_mfma") or len(i.defs) != 1:
                for r_ in i.defs:
                    if r_[0] in "va": V["%s%d" % r_] = None
            elif re.match(r"v\d+$", d): vset(d, r)
            continue
        for r_ in i.defs:
            if r_[0] in "va": V["%s%d" % r_] = None
    return res

if __name__ == "__main__":
    path = sys.argv[1]
    for wg, wave in ((3, 0), (3, 1), (3, 3)):
        res = run(path, wg, wave)
        tot = collections.OrderedDict(); unk = collections.Counter()
        for nm, mn, l, e in res.values():
            if e is None: unk[mn] += 1; continue
            if e: tot.setdefault((nm // 40 * 40, mn), [0, 0]); tot[(nm // 40 * 40, mn)][0] += e; tot[(nm // 40 * 40, mn)][1] += 1
        print("wg", wg, "wave", wave, "total extra", sum(x[0] for x in tot.values()), "unknown", dict(unk))
        if wave == 0 or len(sys.argv) > 2:
            for kx, x in tot.items(): print("   mfma~%d %s extra %d over %d instrs" % (kx[0], kx[1], x[0], x[1]))
```
